```python
import torch

def _softmax(x, axis=-1):
    return torch.softmax(x, dim=axis)
def _gelu(x):
    return torch.nn.functional.gelu(x, approximate="tanh")
def _silu(x):
    return torch.nn.functional.silu(x)
def _sigmoid(x):
    return torch.sigmoid(x)
def _layernorm(x, axis=-1, eps=1e-5):
    m = x.mean(dim=axis, keepdim=True)
    v = x.var(dim=axis, keepdim=True, unbiased=False)
    return (x - m) / torch.sqrt(v + eps)
def _scatter_add(tgt, idx, src, axis=0):
    return tgt.clone().index_add_(axis, idx, src)
def _segment_sum(src, seg, n):
    out = torch.zeros((n,) + src.shape[1:], dtype=src.dtype)
    return out.index_add_(0, seg, src)
def _pad(x, pw):
    flat = tuple(v for pair in reversed(pw) for v in pair)
    return torch.nn.functional.pad(x, flat)

kernel_name = 'concat_heads__sliding_block_cached__sliding_block_cached__decode'

def setup_inputs():

    _w = (lambda a: (lambda t: t.to(torch.bfloat16) if t.is_floating_point() else t)(torch.as_tensor(a)))
    def _A_setup():
        B, Sq, D = 8, 1, 512
        Hq, Hkv, Sk, Dh = 32, 8, 4096, 128
        assert Hq % Hkv == 0, (Hq, Hkv)
        return {
            "x": _w((lambda *s: torch.randn(*s, dtype=torch.bfloat16) * 0.8)(B, Sq, D)),
            "k_cache": _w((lambda *s: torch.randn(*s, dtype=torch.bfloat16) * 0.8)(B, Hkv, Sk, Dh)),
            "v_cache": _w((lambda *s: torch.randn(*s, dtype=torch.bfloat16) * 0.05)(B, Hkv, Sk, Dh)),
            "wq": _w((lambda *s: torch.randn(*s, dtype=torch.bfloat16) * 0.8)(D, Hq * Dh) * (D ** -0.5)),
            "wo": _w((lambda *s: torch.randn(*s, dtype=torch.bfloat16) * 0.05)(Hq * Dh, D) * ((Hq * Dh) ** -0.5)),
        }
    _A_in = _A_setup()

    def _B_setup():
        B, Sq, D = 8, 1, 512
        Hq, Hkv, Sk, Dh = 32, 8, 4096, 128
        assert Hq % Hkv == 0, (Hq, Hkv)
        return {
            "x": _w((lambda *s: torch.randn(*s, dtype=torch.bfloat16) * 0.8)(B, Sq, D)),
            "k_cache": _w((lambda *s: torch.randn(*s, dtype=torch.bfloat16) * 0.8)(B, Hkv, Sk, Dh)),
            "v_cache": _w((lambda *s: torch.randn(*s, dtype=torch.bfloat16) * 0.05)(B, Hkv, Sk, Dh)),
            "wq": _w((lambda *s: torch.randn(*s, dtype=torch.bfloat16) * 0.8)(D, Hq * Dh) * (D ** -0.5)),
            "wo": _w((lambda *s: torch.randn(*s, dtype=torch.bfloat16) * 0.05)(Hq * Dh, D) * ((Hq * Dh) ** -0.5)),
        }
    _B_in = _B_setup()

    return {
        "A_x": _A_in["x"],
        "A_k_cache": _A_in["k_cache"],
        "A_v_cache": _A_in["v_cache"],
        "A_wq": _A_in["wq"],
        "A_wo": _A_in["wo"],
        "B_x": _B_in["x"],
        "B_k_cache": _B_in["k_cache"],
        "B_v_cache": _B_in["v_cache"],
        "B_wq": _B_in["wq"],
        "B_wo": _B_in["wo"],
    }

def reference(A_x, A_k_cache, A_v_cache, A_wq, A_wo, B_x, B_k_cache, B_v_cache, B_wq, B_wo):
    def _A_ref(x, k_cache, v_cache, wq, wo):
        B, Sq, D = x.shape
        Hq, Dh = 32, 128
        Hkv, Sk = k_cache.shape[1], k_cache.shape[2]
        W = min(4096, max(256, Sk // 4))
        rep = Hq // Hkv
        q = (lambda x, *d: x.permute(*d))((x @ wq).reshape(B, Sq, Hq, Dh), 0, 2, 1, 3)
        k = (lambda x, n, axis: torch.repeat_interleave(x, n, dim=axis))(k_cache[:, :, Sk - W:, :], rep, axis=1)
        v = (lambda x, n, axis: torch.repeat_interleave(x, n, dim=axis))(v_cache[:, :, Sk - W:, :], rep, axis=1)
        scores = torch.einsum("bhqd,bhkd->bhqk", q, k) * (Dh ** -0.5)
        p = _softmax(scores, axis=-1)
        o = torch.einsum("bhqk,bhkd->bhqd", p, v)
        return (lambda x, *d: x.permute(*d))(o, 0, 2, 1, 3).reshape(B, Sq, Hq * Dh) @ wo

    def _B_ref(x, k_cache, v_cache, wq, wo):
        B, Sq, D = x.shape
        Hq, Dh = 32, 128
        Hkv, Sk = k_cache.shape[1], k_cache.shape[2]
        W = min(4096, max(256, Sk // 4))
        rep = Hq // Hkv
        q = (lambda x, *d: x.permute(*d))((x @ wq).reshape(B, Sq, Hq, Dh), 0, 2, 1, 3)
        k = (lambda x, n, axis: torch.repeat_interleave(x, n, dim=axis))(k_cache[:, :, Sk - W:, :], rep, axis=1)
        v = (lambda x, n, axis: torch.repeat_interleave(x, n, dim=axis))(v_cache[:, :, Sk - W:, :], rep, axis=1)
        scores = torch.einsum("bhqd,bhkd->bhqk", q, k) * (Dh ** -0.5)
        p = _softmax(scores, axis=-1)
        o = torch.einsum("bhqk,bhkd->bhqd", p, v)
        return (lambda x, *d: x.permute(*d))(o, 0, 2, 1, 3).reshape(B, Sq, Hq * Dh) @ wo

    a = _A_ref(A_x, A_k_cache, A_v_cache, A_wq, A_wo)
    b = _B_ref(B_x, B_k_cache, B_v_cache, B_wq, B_wo)
    return torch.concatenate([a, b], axis=-1)
```

```python
import sys, math, struct

NAME = "concat_heads__sliding_block_cached__sliding_block_cached__decode_kernel"

HEADER = """; Kernarg layout for this problem (104 bytes, ptrs only, base s[0:1]):
"""

def f32bits(x):
    return struct.unpack("<I", struct.pack("<f", x))[0]

C_SCALE = f32bits(math.log2(math.e) / math.sqrt(128.0))

QP = 0x000000
OB = 0x100000
OW = 0x180000
PB = 0x200000
TS = 0x400000
WS_BYTES = 285229056

L_C1, L_C2, L_C3, L_C4 = 0, 4, 8, 12
L_QL = 64
L_ST = 1088
L_QR = 1536
QR_W = 4224
L_AP = L_QR + 4 * QR_W
AP_A = 2112
LDS_BYTES = L_AP + 8 * AP_A

SPIN_MAX = 1 << 22


class Asm:
    def __init__(self):
        self.L = []
        self.nlab = 0

    def __call__(self, s):
        self.L.append("    " + s)

    def label(self, s):
        self.L.append(s + ":")

    def newlabel(self, pfx="L"):
        self.nlab += 1
        return f"{pfx}_{self.nlab}"


def gen(instr=False, ldflag="nt", wo_gate=True, prio=False, poll_sleep=1):
    A = Asm()
    nts = [0]

    def stamp(slot):
        if instr:
            A(f"s_memrealtime s[{64 + 2 * slot}:{65 + 2 * slot}]")

    def srd(d, lo, nbytes):
        A(f"s_mov_b32 s{d}, s{lo}")
        A(f"s_and_b32 s{d + 1}, s{lo + 1}, 0xffff")
        A(f"s_mov_b32 s{d + 2}, {nbytes}")
        A(f"s_mov_b32 s{d + 3}, 0x20000")

    def lds_wait_eq(addr_v, tmp_v, val, sleep=1):
        lab = A.newlabel("L_lw")
        done = A.newlabel("L_lwd")
        A(f"s_mov_b32 s60, {SPIN_MAX}")
        A.label(lab)
        A(f"ds_read_b32 v{tmp_v}, v{addr_v}")
        A("s_waitcnt lgkmcnt(0)")
        A(f"v_readfirstlane_b32 s61, v{tmp_v}")
        A(f"s_cmp_ge_u32 s61, {val}")
        A(f"s_cbranch_scc1 {done}")
        if sleep:
            A(f"s_sleep {sleep}")
        A("s_sub_u32 s60, s60, 1")
        A("s_cmp_lg_u32 s60, 0")
        A(f"s_cbranch_scc1 {lab}")
        A.label(done)

    def dump_stamps(nslots):
        if not instr:
            return
        A("s_waitcnt lgkmcnt(0)")
        A("s_mul_i32 s60, s2, 12")
        A("s_add_u32 s60, s60, s6")
        A("s_lshl_b32 s60, s60, 7")
        A(f"s_add_u32 s60, s60, {TS}")
        A("s_mov_b64 exec, 1")
        A("v_mov_b32 v1, 0")
        for i in range(nslots):
            A(f"v_mov_b32 v2, s{64 + 2 * i}")
            A(f"v_mov_b32 v3, s{65 + 2 * i}")
            A(f"buffer_store_dwordx2 v[2:3], v1, s[48:51], s60 offen offset:{8 * i}")
            A("s_nop 1")
        A("s_mov_b64 exec, -1")

    A.label(NAME)
    stamp(0)
    A("s_cmp_ge_u32 s2, 256")
    A("s_cbranch_scc1 L_end")
    A("s_lshr_b32 s3, s2, 7")
    A("s_mul_i32 s4, s3, 40")
    A("s_add_u32 s4, s0, s4")
    A("s_addc_u32 s5, s1, 0")
    A("s_load_dwordx8 s[8:15], s[4:5], 0")
    A("s_load_dwordx2 s[16:17], s[4:5], 32")
    A("s_load_dwordx4 s[20:23], s[0:1], 80")
    A("s_load_dwordx2 s[24:25], s[0:1], 96")
    A("v_lshrrev_b32 v1, 6, v0")
    A("v_mov_b32 v2, 0")
    A("v_readfirstlane_b32 s6, v1")
    A("v_and_b32 v1, 63, v0")
    A("v_mov_b32 v3, 0")
    A("v_mov_b32 v4, 0")
    A("v_mov_b32 v5, 0")
    A("v_mov_b32 v6, 0")
    A("s_cmp_lg_u32 s6, 0")
    A("s_cbranch_scc1 L_noinit")
    A("ds_write_b128 v6, v[2:5]")
    A.label("L_noinit")
    A("s_and_b32 s26, s2, 127")
    A("s_waitcnt lgkmcnt(0)")
    A("s_barrier")
    if instr:
        srd(48, 24, WS_BYTES)
    A("s_cmp_lt_u32 s6, 4")
    A("s_cbranch_scc1 L_helper")

    KR, VR, QF, SR = 8, 72, 136, 152
    ACC, VT, PP = 8, 40, 136
    if prio:
        A("s_setprio 1")
    srd(28, 10, 67108864)
    srd(32, 12, 67108864)
    A("s_sub_u32 s7, s6, 4")
    A("s_lshr_b32 s36, s26, 1")
    A("s_lshl_b32 s36, s36, 20")
    A("s_and_b32 s37, s26, 1")
    A("s_lshl_b32 s37, s37, 17")
    A("s_add_u32 s36, s36, s37")
    A("s_lshl_b32 s37, s7, 14")
    A("s_add_u32 s36, s36, s37")
    A("s_add_u32 s36, s36, 786432")
    A("s_add_u32 s37, s36, 4096")
    A("s_add_u32 s38, s36, 8192")
    A("s_add_u32 s39, s36, 12288")
    A("v_and_b32 v2, 3, v1")
    A("v_lshlrev_b32 v2, 10, v2")
    A("v_bfe_u32 v3, v1, 2, 2")
    A("v_lshl_add_u32 v2, v3, 8, v2")
    A("v_lshrrev_b32 v4, 4, v1")
    A("v_lshl_add_u32 v2, v4, 4, v2")
    A("v_lshlrev_b32 v3, 4, v1")
    for T in range(4):
        for kk in range(4):
            r = KR + (T * 4 + kk) * 4
            A(f"buffer_load_dwordx4 v[{r}:{r + 3}], v2, s[28:31], s{36 + T} offen offset:{kk * 64} {ldflag}")
    for i in range(16):
        r = VR + i * 4
        A(f"buffer_load_dwordx4 v[{r}:{r + 3}], v3, s[32:35], s{36 + i // 4} offen offset:{(i % 4) * 1024} {ldflag}")
    stamp(1)
    A("v_mov_b32 v5, 1")
    A(f"v_mov_b32 v6, {L_C4}")
    A("s_mov_b64 exec, 1")
    A("ds_add_u32 v6, v5")
    A("s_mov_b64 exec, -1")
    A("v_and_b32 v7, 3, v1")
    A("v_lshlrev_b32 v7, 8, v7")
    A("v_lshl_add_u32 v7, v4, 4, v7")
    A(f"v_mov_b32 v6, {L_C3}")
    lds_wait_eq(6, 5, 4, sleep=2)
    stamp(2)
    for kk in range(4):
        A(f"ds_read_b128 v[{QF + 4 * kk}:{QF + 4 * kk + 3}], v7 offset:{L_QL + kk * 64}")
    A(f"s_mov_b32 s40, {C_SCALE}")
    A("s_mov_b32 s41, 0x05040100")
    A("s_mov_b32 s42, 0x07060302")
    A("s_waitcnt lgkmcnt(0)")
    for T in range(4):
        A(f"s_waitcnt vmcnt({28 - 4 * T})")
        for kk in range(4):
            r = KR + (T * 4 + kk) * 4
            c = "0" if kk == 0 else f"v[{SR + 4 * T}:{SR + 4 * T + 3}]"
            A(f"v_mfma_f32_16x16x32_bf16 v[{SR + 4 * T}:{SR + 4 * T + 3}], v[{r}:{r + 3}], v[{QF + 4 * kk}:{QF + 4 * kk + 3}], {c}")
    stamp(3)
    A("v_and_b32 v5, 3, v1")
    A("v_mul_u32_u24 v5, 528, v5")
    A("v_lshl_add_u32 v5, v4, 7, v5")
    A(f"s_mul_i32 s43, s7, {AP_A}")
    A(f"s_add_u32 s43, s43, {L_AP}")
    A("v_add_u32 v5, s43, v5")
    A("s_nop 3")
    A(f"v_max3_f32 v2, v{SR}, v{SR + 1}, v{SR + 2}")
    for i in range(3, 15, 2):
        A(f"v_max3_f32 v2, v2, v{SR + i}, v{SR + i + 1}")
    A(f"v_max_f32 v2, v2, v{SR + 15}")
    A("v_mov_b32 v3, v2")
    A("s_nop 1")
    A("v_permlane32_swap_b32 v2, v3")
    A("s_nop 1")
    A("v_max_f32 v2, v2, v3")
    A("v_mov_b32 v3, v2")
    A("s_nop 1")
    A("v_permlane16_swap_b32 v2, v3")
    A("s_nop 1")
    A("v_max_f32 v2, v2, v3")
    A("v_mul_f32 v2, s40, v2")
    for i in range(16):
        A(f"v_fma_f32 v{SR + i}, v{SR + i}, s40, -v2")
    for i in range(16):
        A(f"v_exp_f32 v{SR + i}, v{SR + i}")
    A("s_nop 0")
    for u in range(8):
        A(f"v_cvt_pk_bf16_f32 v{PP + u}, v{SR + 2 * u}, v{SR + 2 * u + 1}")
    A(f"v_add_f32 v3, v{SR}, v{SR + 1}")
    A(f"v_add_f32 v6, v{SR + 2}, v{SR + 3}")
    for i in range(4, 16, 2):
        A(f"v_add_f32 v3, v3, v{SR + i}")
        A(f"v_add_f32 v6, v6, v{SR + i + 1}")
    A("v_add_f32 v3, v3, v6")
    A("v_mov_b32 v6, v3")
    A("s_nop 1")
    A("v_permlane32_swap_b32 v3, v6")
    A("s_nop 1")
    A("v_add_f32 v3, v3, v6")
    A("v_mov_b32 v6, v3")
    A("s_nop 1")
    A("v_permlane16_swap_b32 v3, v6")
    A("s_nop 1")
    A("v_add_f32 v3, v3, v6")
    A("v_lshlrev_b32 v6, 5, v1")
    A("s_lshl_b32 s43, s7, 2")
    A(f"s_add_u32 s43, s43, {L_ST}")
    A("v_add_u32 v6, s43, v6")
    A("s_mov_b64 exec, 15")
    A("ds_write_b32 v6, v2")
    A("ds_write_b32 v6, v3 offset:128")
    A("s_mov_b64 exec, -1")
    for G in range(2):
        for u in range(4):
            A(f"s_waitcnt vmcnt({15 - (8 * G + 2 * u + 1)})")
            r0 = VR + (8 * G + 2 * u) * 4
            r1 = r0 + 4
            for t in range(8):
                sel = "s41" if (t & 1) == 0 else "s42"
                A(f"v_perm_b32 v{VT + 4 * t + u}, v{r1 + (t >> 1)}, v{r0 + (t >> 1)}, {sel}")
        A("s_nop 1")
        for t in range(8):
            c = "0" if G == 0 else f"v[{ACC + 4 * t}:{ACC + 4 * t + 3}]"
            A(f"v_mfma_f32_16x16x32_bf16 v[{ACC + 4 * t}:{ACC + 4 * t + 3}], v[{VT + 4 * t}:{VT + 4 * t + 3}], v[{PP + 4 * G}:{PP + 4 * G + 3}], {c}")
    stamp(4)
    A("s_mov_b32 exec_lo, 0x000f000f")
    A("s_mov_b32 exec_hi, 0x000f000f")
    A("s_nop 0")
    for t in range(8):
        if t == 7:
            A("s_nop 0")
        A(f"ds_write_b128 v5, v[{ACC + 4 * t}:{ACC + 4 * t + 3}] offset:{16 * t}")
    A("s_mov_b64 exec, -1")
    A("s_waitcnt lgkmcnt(0)")
    A("s_barrier")
    stamp(5)
    dump_stamps(6)
    A("s_endpgm")

    A.label("L_helper")
    W, XF, HT, HACC = 8, 40, 44, 76
    if prio:
        A("s_setprio 2")
    srd(28, 8, 8192)
    srd(32, 14, 4194304)
    srd(36, 16, 4194304)
    srd(40, 22, 256)
    srd(44, 20, 16384)
    if not instr:
        srd(48, 24, WS_BYTES)
    A("s_lshr_b32 s27, s26, 2")
    A("s_and_b32 s52, s26, 3")
    A("v_lshrrev_b32 v4, 4, v1")
    A("v_and_b32 v5, 15, v1")
    A("v_and_b32 v2, 7, v1")
    A("v_lshlrev_b32 v2, 10, v2")
    A("v_lshl_add_u32 v2, v4, 4, v2")
    A("s_lshl_b32 s53, s52, 7")
    A("s_lshl_b32 s54, s6, 5")
    A("s_add_u32 s53, s53, s54")
    A("s_lshl_b32 s54, s53, 1")
    A(f"buffer_load_dwordx4 v[{XF}:{XF + 3}], v2, s[28:31], s54 offen")
    A("v_lshlrev_b32 v3, 16, v4")
    A("v_lshl_add_u32 v3, v5, 4, v3")
    A("s_lshl_b32 s54, s53, 13")
    A("s_lshl_b32 s55, s27, 8")
    A("s_add_u32 s54, s54, s55")
    for e in range(8):
        A(f"buffer_load_dwordx4 v[{W + 4 * e}:{W + 4 * e + 3}], v3, s[32:35], s54 offen {ldflag}")
        if e < 7:
            A("s_add_u32 s54, s54, 8192")
    A("v_mov_b32 v108, -1")
    A("v_mov_b32 v109, -1")
    A("v_mov_b32 v110, -1")
    A("v_mov_b32 v111, -1")
    A("v_lshlrev_b32 v6, 4, v1")
    A("s_lshl_b32 s54, s2, 12")
    A("s_lshl_b32 s55, s6, 10")
    A("s_add_u32 s54, s54, s55")
    A(f"s_add_u32 s54, s54, {PB}")
    A("buffer_store_dwordx4 v[108:111], v6, s[48:51], s54 offen sc1")
    A("s_lshl_b32 s56, s2, 11")
    A("s_lshl_b32 s55, s6, 9")
    A("s_add_u32 s56, s56, s55")
    A(f"s_add_u32 s56, s56, {OB}")
    A("s_lshl_b32 s57, s2, 4")
    A("s_lshl_b32 s55, s6, 2")
    A("s_add_u32 s57, s57, s55")
    A(f"s_add_u32 s57, s57, {OW}")
    A("s_mov_b32 exec_hi, 0")
    A("buffer_store_dwordx4 v[108:111], v6, s[48:51], s56 offen sc1")
    A("s_mov_b64 exec, 1")
    A("buffer_store_dword v108, v6, s[48:51], s57 offen sc1")
    A("s_mov_b64 exec, -1")
    A("s_mov_b32 s58, 0x05040100")
    A("s_mov_b32 s59, 0x07060302")

    def transpose_and_mfma(bop, first_wait):
        for u in range(4):
            if first_wait is not None:
                A(f"s_waitcnt vmcnt({first_wait - (2 * u + 1)})")
            r0 = W + 8 * u
            r1 = r0 + 4
            for t in range(8):
                sel = "s58" if (t & 1) == 0 else "s59"
                A(f"v_perm_b32 v{HT + 4 * t + u}, v{r1 + (t >> 1)}, v{r0 + (t >> 1)}, {sel}")

    def do_mfma(bop):
        for t in range(8):
            A(f"v_mfma_f32_16x16x32_bf16 v[{HACC + 4 * t}:{HACC + 4 * t + 3}], v[{HT + 4 * t}:{HT + 4 * t + 3}], v[{bop}:{bop + 3}], 0")

    transpose_and_mfma(XF, 10)
    stamp(1)
    A("v_mul_u32_u24 v7, 528, v5")
    A("v_lshl_add_u32 v7, v4, 7, v7")
    A(f"s_mul_i32 s54, s6, {QR_W}")
    A(f"s_add_u32 s54, s54, {L_QR}")
    A("v_add_u32 v7, s54, v7")
    do_mfma(XF)
    A("v_lshrrev_b32 v2, 5, v1")
    A("s_lshl_b32 s54, s6, 1")
    A("v_add_u32 v2, s54, v2")
    A("v_and_b32 v3, 31, v1")
    A("v_mul_u32_u24 v112, 528, v2")
    A("v_lshl_add_u32 v112, v3, 4, v112")
    A(f"v_add_u32 v112, {L_QR}, v112")

    def reduce_helpers(sync):
        A("s_mov_b32 exec_lo, 0x00ff00ff")
        A("s_mov_b32 exec_hi, 0x00ff00ff")
        for t in range(8):
            A(f"ds_write_b128 v7, v[{HACC + 4 * t}:{HACC + 4 * t + 3}] offset:{16 * t}")
        A("s_mov_b64 exec, -1")
        A("s_waitcnt lgkmcnt(0)")
        sync()
        for w in range(4):
            A(f"ds_read_b128 v[{116 + 4 * w}:{119 + 4 * w}], v112 offset:{w * QR_W}")
        A("s_waitcnt lgkmcnt(0)")
        for i in range(4):
            A(f"v_add_f32 v{116 + i}, v{116 + i}, v{120 + i}")
            A(f"v_add_f32 v{124 + i}, v{124 + i}, v{128 + i}")
        for i in range(4):
            A(f"v_add_f32 v{116 + i}, v{116 + i}, v{124 + i}")

    def sync_c1():
        A("v_mov_b32 v113, 1")
        A(f"v_mov_b32 v114, {L_C1}")
        A("s_mov_b64 exec, 1")
        A("ds_add_u32 v114, v113")
        A("s_mov_b64 exec, -1")
        lds_wait_eq(114, 113, 4, sleep=0)

    A("s_nop 1")
    reduce_helpers(sync_c1)
    A("v_lshlrev_b32 v113, 16, v2")
    A("v_lshl_add_u32 v113, v3, 4, v113")
    A("s_lshl_b32 s54, s3, 19")
    A("s_lshl_b32 s55, s27, 11")
    A("s_add_u32 s54, s54, s55")
    A("s_lshl_b32 s55, s52, 9")
    A("s_add_u32 s54, s54, s55")
    if QP:
        A(f"s_add_u32 s54, s54, {QP}")
    A("buffer_store_dwordx4 v[116:119], v113, s[48:51], s54 offen sc1")
    A("s_waitcnt vmcnt(0)")
    stamp(2)
    A("v_mov_b32 v113, 1")
    A(f"v_mov_b32 v114, {L_C2}")
    A("s_mov_b64 exec, 1")
    A("ds_add_rtn_u32 v115, v114, v113")
    A("s_waitcnt lgkmcnt(0)")
    A("v_readfirstlane_b32 s54, v115")
    A("s_cmp_lg_u32 s54, 3")
    A("s_cbranch_scc1 L_noflag")
    A("v_mov_b32 v114, s2")
    A("buffer_store_byte v113, v114, s[40:43], 0 offen sc1")
    A.label("L_noflag")
    A("s_mov_b64 exec, -1")
    A("v_lshlrev_b32 v113, 2, v1")
    A("s_mov_b32 s55, 0x01010101")
    A(f"s_mov_b32 s60, {SPIN_MAX}")
    A.label("L_pollflags")
    A("buffer_load_dword v114, v113, s[40:43], 0 offen sc1")
    A("s_waitcnt vmcnt(0)")
    A("v_cmp_ne_u32 vcc, s55, v114")
    A("s_cbranch_vccz L_flagsok")
    if poll_sleep:
        A(f"s_sleep {poll_sleep}")
    A("s_sub_u32 s60, s60, 1")
    A("s_cmp_lg_u32 s60, 0")
    A("s_cbranch_scc1 L_pollflags")
    A.label("L_flagsok")
    stamp(3)
    A("s_lshr_b32 s54, s26, 1")
    A("s_lshl_b32 s54, s54, 13")
    A("s_lshl_b32 s55, s3, 19")
    A("s_add_u32 s54, s54, s55")
    A("s_lshl_b32 s55, s6, 11")
    A("s_add_u32 s54, s54, s55")
    if QP:
        A(f"s_add_u32 s54, s54, {QP}")
    A("v_lshlrev_b32 v113, 4, v3")
    for k in range(4):
        A(f"buffer_load_dwordx4 v[{116 + 4 * k}:{119 + 4 * k}], v113, s[48:51], s54 offen offset:{512 * k} sc1")
    A("v_lshrrev_b32 v114, 3, v3")
    A("v_lshlrev_b32 v114, 6, v114")
    A("v_and_b32 v115, 7, v3")
    A("v_lshl_add_u32 v114, v115, 1, v114")
    A("s_lshl_b32 s55, s6, 8")
    A(f"s_add_u32 s55, s55, {L_QL}")
    A("v_add_u32 v114, s55, v114")
    A("s_waitcnt vmcnt(0)")
    for i in range(4):
        A(f"v_add_f32 v{116 + i}, v{116 + i}, v{120 + i}")
        A(f"v_add_f32 v{124 + i}, v{124 + i}, v{128 + i}")
    for i in range(4):
        A(f"v_add_f32 v{116 + i}, v{116 + i}, v{124 + i}")
    A("v_cvt_pk_bf16_f32 v116, v116, v117")
    A("v_cvt_pk_bf16_f32 v118, v118, v119")
    A("s_mov_b32 exec_hi, 0")
    A("ds_write_b16 v114, v116")
    A("ds_write_b16_d16_hi v114, v116 offset:16")
    A("ds_write_b16 v114, v118 offset:32")
    A("ds_write_b16_d16_hi v114, v118 offset:48")
    A("s_waitcnt lgkmcnt(0)")
    A("v_mov_b32 v113, 1")
    A(f"v_mov_b32 v114, {L_C3}")
    A("s_mov_b64 exec, 1")
    A("ds_add_u32 v114, v113")
    A("s_mov_b64 exec, -1")
    stamp(4)
    if prio:
        A("s_setprio 0")
    if wo_gate:
        A(f"v_mov_b32 v114, {L_C4}")
        lds_wait_eq(114, 113, 8, sleep=2)
    A("v_lshlrev_b32 v113, 11, v4")
    A("v_lshl_add_u32 v113, v5, 4, v113")
    A("s_lshl_b32 s54, s27, 7")
    A("s_lshl_b32 s55, s6, 5")
    A("s_add_u32 s54, s54, s55")
    A("s_lshl_b32 s54, s54, 10")
    A("s_lshl_b32 s55, s52, 8")
    A("s_add_u32 s54, s54, s55")
    for e in range(8):
        row = 8 * (e & 3) + (e >> 2)
        A(f"s_add_u32 s55, s54, {8 * (e & 3) * 1024}")
        A(f"buffer_load_dwordx4 v[{W + 4 * e}:{W + 4 * e + 3}], v113, s[36:39], s55 offen offset:{(e >> 2) * 1024} {ldflag}")
    if prio:
        A("s_setprio 2")
    stamp(5)
    A("s_mul_i32 s54, s6, 528")
    A(f"s_add_u32 s54, s54, {L_AP}")
    A("v_lshlrev_b32 v113, 4, v3")
    A("v_add_u32 v113, s54, v113")
    A("s_lshl_b32 s54, s6, 5")
    A(f"s_add_u32 s54, s54, {L_ST}")
    A("v_mov_b32 v114, s54")
    A("s_barrier")
    stamp(6)
    CB = 116
    A(f"ds_read_b128 v[{CB}:{CB + 3}], v114")
    A(f"ds_read_b128 v[{CB + 4}:{CB + 7}], v114 offset:16")
    A(f"ds_read_b128 v[{CB + 8}:{CB + 11}], v114 offset:128")
    A(f"ds_read_b128 v[{CB + 12}:{CB + 15}], v114 offset:144")
    for a in range(8):
        A(f"ds_read_b128 v[{HACC + 4 * a}:{HACC + 4 * a + 3}], v113 offset:{a * AP_A}")
    A("s_waitcnt lgkmcnt(10)" if not instr else "s_waitcnt lgkmcnt(0)")
    A(f"v_max3_f32 v115, v{CB}, v{CB + 1}, v{CB + 2}")
    A(f"v_max3_f32 v115, v115, v{CB + 3}, v{CB + 4}")
    A(f"v_max3_f32 v115, v115, v{CB + 5}, v{CB + 6}")
    A(f"v_max_f32 v115, v115, v{CB + 7}")
    for a in range(8):
        A(f"v_sub_f32 v{CB + a}, v{CB + a}, v115")
    for a in range(8):
        A(f"v_exp_f32 v{CB + a}, v{CB + a}")
    A("s_waitcnt lgkmcnt(8)" if not instr else "s_waitcnt lgkmcnt(0)")
    A(f"v_mul_f32 v132, v{CB}, v{CB + 8}")
    for a in range(1, 8):
        A(f"v_fmac_f32 v132, v{CB + a}, v{CB + 8 + a}")
    A("v_rcp_f32 v133, v132")
    A("v_log_f32 v134, v132")
    A("s_waitcnt lgkmcnt(0)")
    for i in range(4):
        A(f"v_mul_f32 v{136 + i}, v{CB}, v{HACC + i}")
    for a in range(1, 8):
        for i in range(4):
            A(f"v_fmac_f32 v{136 + i}, v{CB + a}, v{HACC + 4 * a + i}")
    A("v_add_f32 v134, v134, v115")
    for i in range(4):
        A(f"v_mul_f32 v{136 + i}, v133, v{136 + i}")
    for i in range(4):
        A(f"v_and_b32 v{136 + i}, -2, v{136 + i}")
    A("v_and_b32 v134, -2, v134")
    A("s_mov_b32 exec_hi, 0")
    A("buffer_store_dwordx4 v[136:139], v6, s[48:51], s56 offen sc1")
    A("s_mov_b64 exec, 1")
    A("buffer_store_dword v134, v6, s[48:51], s57 offen sc1")
    A("s_mov_b64 exec, -1")
    stamp(7)
    A("v_and_b32 v113, 7, v1")
    A("v_lshlrev_b32 v113, 4, v113")
    A("v_bfe_u32 v114, v1, 3, 1")
    A("v_add_u32 v113, v113, v114")
    A("s_lshr_b32 s54, s27, 2")
    A("s_lshl_b32 s54, s54, 1")
    A("s_lshl_b32 s55, s3, 7")
    A("s_add_u32 s54, s54, s55")
    A("v_add_u32 v113, s54, v113")
    A("v_lshlrev_b32 v114, 4, v113")
    A("v_lshlrev_b32 v113, 11, v113")
    A("v_lshl_add_u32 v113, v4, 5, v113")
    A("s_and_b32 s55, s27, 3")
    A("s_lshl_b32 s54, s55, 9")
    A("s_lshl_b32 s53, s6, 7")
    A("s_add_u32 s54, s54, s53")
    A(f"s_add_u32 s54, s54, {OB}")
    A("s_lshl_b32 s55, s55, 2")
    A(f"s_add_u32 s55, s55, {OW}")
    transpose_and_mfma(None, 9)
    stamp(8)
    A(f"s_mov_b32 s60, {SPIN_MAX}")
    A.label("L_pollo")
    A("buffer_load_dwordx4 v[116:119], v113, s[48:51], s54 offen sc1")
    A("buffer_load_dwordx4 v[120:123], v113, s[48:51], s54 offen offset:16 sc1")
    A("buffer_load_dword v124, v114, s[48:51], s55 offen sc1")
    A("s_waitcnt vmcnt(0)")
    A("v_or3_b32 v125, v116, v117, v118")
    A("v_or3_b32 v126, v119, v120, v121")
    A("v_or3_b32 v127, v122, v123, v124")
    A("v_or3_b32 v125, v125, v126, v127")
    A("v_and_b32 v125, 1, v125")
    A("v_cmp_ne_u32 vcc, 0, v125")
    A("s_cbranch_vccz L_ook")
    A("s_sub_u32 s60, s60, 1")
    A("s_cmp_lg_u32 s60, 0")
    A("s_cbranch_scc1 L_pollo")
    A.label("L_ook")
    stamp(9)
    A("v_mov_b32_dpp v125, v124 row_ror:8 row_mask:0xf bank_mask:0xf")
    A("v_sub_f32 v125, v125, v124")
    A("v_exp_f32 v125, v125")
    A("s_nop 0")
    A("v_add_f32 v125, 1.0, v125")
    A("v_rcp_f32 v125, v125")
    A("s_nop 0")
    for i in range(8):
        A(f"v_mul_f32 v{116 + i}, v125, v{116 + i}")
    for i in range(8):
        A(f"v_add_f32_dpp v{128 + i}, v{116 + i}, v{116 + i} row_ror:8 row_mask:0xf bank_mask:0xf")
    for u in range(4):
        A(f"v_cvt_pk_bf16_f32 v{XF + u}, v{128 + 2 * u}, v{128 + 2 * u + 1}")
    A("s_nop 1")
    do_mfma(XF)
    A("v_lshlrev_b32 v113, 2, v2")
    A("v_lshrrev_b32 v114, 3, v3")
    A("v_add_u32 v113, v113, v114")
    A("v_lshlrev_b32 v113, 12, v113")
    A("v_and_b32 v114, 7, v3")
    A("v_lshl_add_u32 v113, v114, 4, v113")
    A("s_lshl_b32 s54, s3, 19")
    A("s_lshl_b32 s55, s52, 17")
    A("s_add_u32 s54, s54, s55")
    A("s_lshl_b32 s55, s27, 7")
    A("s_add_u32 s54, s54, s55")
    A(f"s_add_u32 s54, s54, {PB}")
    reduce_helpers(lambda: A("s_barrier"))
    for i in range(4):
        A(f"v_and_b32 v{116 + i}, -2, v{116 + i}")
    A("buffer_store_dwordx4 v[116:119], v113, s[48:51], s54 offen sc1")
    stamp(10)
    A("s_cmp_lg_u32 s6, 0")
    A("s_cbranch_scc1 L_hend")
    A("s_lshl_b32 s54, s2, 12")
    A(f"s_add_u32 s54, s54, {PB}")
    A(f"s_mov_b32 s60, {SPIN_MAX}")
    A.label("L_pollp")
    for i in range(4):
        A(f"buffer_load_dwordx4 v[{8 + 4 * i}:{11 + 4 * i}], v6, s[48:51], s54 offen offset:{1024 * i} sc1")
    A("s_waitcnt vmcnt(0)")
    A("v_or3_b32 v24, v8, v9, v10")
    A("v_or3_b32 v25, v11, v12, v13")
    A("v_or3_b32 v26, v14, v15, v16")
    A("v_or3_b32 v27, v17, v18, v19")
    A("v_or3_b32 v28, v20, v21, v22")
    A("v_or3_b32 v24, v24, v25, v23")
    A("v_or3_b32 v26, v26, v27, v28")
    A("v_or_b32 v24, v24, v26")
    A("v_and_b32 v24, 1, v24")
    A("v_cmp_ne_u32 vcc, 0, v24")
    A("s_cbranch_vccz L_pok")
    A("s_sub_u32 s60, s60, 1")
    A("s_cmp_lg_u32 s60, 0")
    A("s_cbranch_scc1 L_pollp")
    A.label("L_pok")
    stamp(11)
    for i in range(4):
        A(f"v_add_f32 v{8 + i}, v{8 + i}, v{12 + i}")
        A(f"v_add_f32 v{16 + i}, v{16 + i}, v{20 + i}")
    for i in range(4):
        A(f"v_add_f32 v{8 + i}, v{8 + i}, v{16 + i}")
    A("s_nop 1")
    for i in range(4):
        A(f"v_add_f32_dpp v{12 + i}, v{8 + i}, v{8 + i} row_ror:8 row_mask:0xf bank_mask:0xf")
    for i in range(4):
        A(f"v_mov_b32 v{8 + i}, v{12 + i}")
    A("s_nop 1")
    for i in range(4):
        A(f"v_permlane16_swap_b32 v{8 + i}, v{12 + i}")
    A("s_nop 1")
    for i in range(4):
        A(f"v_add_f32 v{12 + i}, v{8 + i}, v{12 + i}")
    for i in range(4):
        A(f"v_mov_b32 v{8 + i}, v{12 + i}")
    A("s_nop 1")
    for i in range(4):
        A(f"v_permlane32_swap_b32 v{8 + i}, v{12 + i}")
    A("s_nop 1")
    for i in range(4):
        A(f"v_add_f32 v{12 + i}, v{8 + i}, v{12 + i}")
    A("v_bfe_u32 v16, v1, 3, 2")
    A("v_cmp_eq_u32 vcc, 1, v16")
    A("s_nop 1")
    A("v_cndmask_b32 v12, v12, v13, vcc")
    A("v_cmp_eq_u32 vcc, 2, v16")
    A("s_nop 1")
    A("v_cndmask_b32 v12, v12, v14, vcc")
    A("v_cmp_eq_u32 vcc, 3, v16")
    A("s_nop 1")
    A("v_cndmask_b32 v12, v12, v15, vcc")
    A("v_cvt_pk_bf16_f32 v12, v12, v12")
    A("s_bfe_u32 s54, s26, 0x30002")
    A("s_lshl_b32 s54, s54, 11")
    A("s_lshl_b32 s55, s3, 10")
    A("s_add_u32 s54, s54, s55")
    A("s_lshr_b32 s55, s26, 5")
    A("s_lshl_b32 s55, s55, 8")
    A("s_add_u32 s54, s54, s55")
    A("s_and_b32 s55, s26, 3")
    A("s_lshl_b32 s55, s55, 6")
    A("s_add_u32 s54, s54, s55")
    A("v_lshlrev_b32 v16, 1, v1")
    A("s_mov_b32 exec_hi, 0")
    A("buffer_store_short v12, v16, s[44:47], s54 offen")
    A("s_mov_b64 exec, -1")
    stamp(12)
    A.label("L_hend")
    dump_stamps(13)
    A.label("L_end")
    A("s_endpgm")

    out = [HEADER.rstrip("\n")]
    out.append(f"; @launch grid=(256,1,1) block=(768,1,1) lds={LDS_BYTES}")
    out.append('.amdgcn_target "amdgcn-amd-amdhsa--gfx950"')
    out.append(".text")
    out.append(f".globl {NAME}")
    out.append(".p2align 8")
    out.append(f".type {NAME},@function")
    out += A.L
    out.append('.section .rodata,"a"')
    out.append(".p2align 6")
    out.append(f".amdhsa_kernel {NAME}")
    out.append("  .amdhsa_next_free_vgpr 168")
    out.append("  .amdhsa_next_free_sgpr 96")
    out.append("  .amdhsa_accum_offset 168")
    out.append("  .amdhsa_group_segment_fixed_size 0")
    out.append("  .amdhsa_kernarg_size 104")
    out.append("  .amdhsa_user_sgpr_count 2")
    out.append("  .amdhsa_user_sgpr_kernarg_segment_ptr 1")
    out.append("  .amdhsa_system_sgpr_workgroup_id_x 1")
    out.append(".end_amdhsa_kernel")
    return "\n".join(out) + "\n"


if __name__ == "__main__":
    import argparse
    ap = argparse.ArgumentParser()
    ap.add_argument("-o", default="concat_heads__sliding_block_cached__sliding_block_cached__decode.s")
    ap.add_argument("--instr", action="store_true")
    ap.add_argument("--ldflag", default="nt")
    ap.add_argument("--no-wo-gate", action="store_true")
    ap.add_argument("--prio", action="store_true")
    a = ap.parse_args()
    open(a.o, "w").write(gen(instr=a.instr, ldflag=a.ldflag, wo_gate=not a.no_wo_gate, prio=a.prio))
```

```python
import sys, math, struct

NAME = "concat_heads__sliding_block_cached__sliding_block_cached__decode_kernel"

HEADER = """; Kernarg layout for this problem (104 bytes, ptrs only, base s[0:1]):
"""

def f32bits(x):
    return struct.unpack("<I", struct.pack("<f", x))[0]

C_SCALE = f32bits(math.log2(math.e) / math.sqrt(128.0))

QP = 0x000000
OB = 0x100000
OW = 0x180000
PB = 0x200000
EP = 0x300000
TS = 0x400000
WS_BYTES = 285229056

L_C1, L_C3, L_C4 = 0, 8, 12
L_QL = 64
L_ST = 1088
L_QR = 1536
QR_W = 4224
L_AP = L_QR + 4 * QR_W
AP_A = 2112
LDS_BYTES = L_AP + 8 * AP_A

SPIN_MAX = 1 << 20


class Asm:
    def __init__(self):
        self.L = []
        self.nlab = 0

    def __call__(self, s):
        self.L.append("    " + s)

    def label(self, s):
        self.L.append(s + ":")

    def newlabel(self, pfx="L"):
        self.nlab += 1
        return f"{pfx}_{self.nlab}"


def gen(instr=False, ldflag="nt", wo_gate=True, prio=False, q_sleep0=0, q_sleep=4, o_levels=((32, 16), (9, 4)), p_levels=((32, 16), (9, 4))):
    A = Asm()

    def stamp(slot):
        if instr:
            A(f"s_memrealtime s[{66 + 2 * slot}:{67 + 2 * slot}]")

    def srd(d, lo, nbytes):
        A(f"s_mov_b32 s{d}, s{lo}")
        A(f"s_and_b32 s{d + 1}, s{lo + 1}, 0xffff")
        A(f"s_mov_b32 s{d + 2}, {nbytes}")
        A(f"s_mov_b32 s{d + 3}, 0x20000")

    def lds_wait_ge(addr_v, tmp_v, val, sleep=1):
        lab = A.newlabel("L_lw")
        done = A.newlabel("L_lwd")
        A(f"s_mov_b32 s60, {SPIN_MAX}")
        A.label(lab)
        A(f"ds_read_b32 v{tmp_v}, v{addr_v}")
        A("s_waitcnt lgkmcnt(0)")
        A(f"v_readfirstlane_b32 s61, v{tmp_v}")
        A(f"s_cmp_ge_u32 s61, {val}")
        A(f"s_cbranch_scc1 {done}")
        if sleep:
            A(f"s_sleep {sleep}")
        A("s_sub_u32 s60, s60, 1")
        A("s_cmp_lg_u32 s60, 0")
        A(f"s_cbranch_scc1 {lab}")
        A.label(done)

    def dump_stamps(nslots):
        if not instr:
            return
        A("s_waitcnt lgkmcnt(0)")
        A("s_mul_i32 s60, s2, 12")
        A("s_add_u32 s60, s60, s6")
        A("s_lshl_b32 s60, s60, 7")
        A(f"s_add_u32 s60, s60, {TS}")
        A("s_mov_b64 exec, 1")
        A("v_mov_b32 v1, 0")
        for i in range(nslots):
            A(f"v_mov_b32 v2, s{66 + 2 * i}")
            A(f"v_mov_b32 v3, s{67 + 2 * i}")
            A(f"buffer_store_dwordx2 v[2:3], v1, s[48:51], s60 offen offset:{8 * i}")
            A("s_nop 1")
        A("s_mov_b64 exec, -1")

    A.label(NAME)
    stamp(0)
    A("s_cmp_ge_u32 s2, 256")
    A("s_cbranch_scc1 L_end")
    A("s_lshr_b32 s3, s2, 7")
    A("s_mul_i32 s4, s3, 40")
    A("s_add_u32 s4, s0, s4")
    A("s_addc_u32 s5, s1, 0")
    A("s_load_dwordx8 s[8:15], s[4:5], 0")
    A("s_load_dwordx2 s[16:17], s[4:5], 32")
    A("s_load_dwordx2 s[20:21], s[0:1], 80")
    A("s_load_dwordx2 s[24:25], s[0:1], 96")
    A("v_lshrrev_b32 v1, 6, v0")
    A("v_mov_b32 v2, 0")
    A("v_readfirstlane_b32 s6, v1")
    A("v_and_b32 v1, 63, v0")
    A("s_and_b32 s26, s2, 127")
    A("v_lshrrev_b32 v4, 4, v1")
    A("s_cmp_lt_u32 s6, 4")
    A("s_cbranch_scc1 L_helper")

    KR, VR, QF, SR = 8, 72, 136, 152
    ACC, VT, PP = 8, 40, 136
    A("s_sub_u32 s7, s6, 4")
    A("s_lshr_b32 s36, s26, 1")
    A("s_lshl_b32 s36, s36, 20")
    A("s_and_b32 s37, s26, 1")
    A("s_lshl_b32 s37, s37, 17")
    A("s_add_u32 s36, s36, s37")
    A("s_lshl_b32 s37, s7, 14")
    A("s_add_u32 s36, s36, s37")
    A("s_add_u32 s36, s36, 786432")
    A("s_add_u32 s37, s36, 4096")
    A("s_add_u32 s38, s36, 8192")
    A("s_add_u32 s39, s36, 12288")
    A("v_and_b32 v2, 3, v1")
    A("v_lshlrev_b32 v2, 10, v2")
    A("v_bfe_u32 v3, v1, 2, 2")
    A("v_lshl_add_u32 v2, v3, 8, v2")
    A("v_lshl_add_u32 v2, v4, 4, v2")
    A("v_lshlrev_b32 v3, 4, v1")
    A("s_waitcnt lgkmcnt(0)")
    srd(28, 10, 67108864)
    srd(32, 12, 67108864)
    if instr:
        srd(48, 24, WS_BYTES)
    A("s_barrier")
    for T in range(4):
        for kk in range(4):
            r = KR + (T * 4 + kk) * 4
            A(f"buffer_load_dwordx4 v[{r}:{r + 3}], v2, s[28:31], s{36 + T} offen offset:{kk * 64} {ldflag}")
    for i in range(16):
        r = VR + i * 4
        A(f"buffer_load_dwordx4 v[{r}:{r + 3}], v3, s[32:35], s{36 + i // 4} offen offset:{(i % 4) * 1024} {ldflag}")
    stamp(1)
    A("v_mov_b32 v5, 1")
    A(f"v_mov_b32 v6, {L_C4}")
    A("s_mov_b64 exec, 1")
    A("ds_add_u32 v6, v5")
    A("s_mov_b64 exec, -1")
    A("v_and_b32 v7, 3, v1")
    A("v_lshlrev_b32 v7, 8, v7")
    A("v_lshl_add_u32 v7, v4, 4, v7")
    A(f"v_mov_b32 v6, {L_C3}")
    lds_wait_ge(6, 5, 4, sleep=2)
    stamp(2)
    for kk in range(4):
        A(f"ds_read_b128 v[{QF + 4 * kk}:{QF + 4 * kk + 3}], v7 offset:{L_QL + kk * 64}")
    A(f"s_mov_b32 s40, {C_SCALE}")
    A("s_mov_b32 s41, 0x05040100")
    A("s_mov_b32 s42, 0x07060302")
    A("s_waitcnt lgkmcnt(0)")
    for T in range(4):
        A(f"s_waitcnt vmcnt({28 - 4 * T})")
        for kk in range(4):
            r = KR + (T * 4 + kk) * 4
            c = "0" if kk == 0 else f"v[{SR + 4 * T}:{SR + 4 * T + 3}]"
            A(f"v_mfma_f32_16x16x32_bf16 v[{SR + 4 * T}:{SR + 4 * T + 3}], v[{r}:{r + 3}], v[{QF + 4 * kk}:{QF + 4 * kk + 3}], {c}")
    stamp(3)
    A("v_and_b32 v5, 3, v1")
    A("v_mul_u32_u24 v5, 528, v5")
    A("v_lshl_add_u32 v5, v4, 7, v5")
    A(f"s_mul_i32 s43, s7, {AP_A}")
    A(f"s_add_u32 s43, s43, {L_AP}")
    A("v_add_u32 v5, s43, v5")
    A("s_nop 3")
    A(f"v_max3_f32 v2, v{SR}, v{SR + 1}, v{SR + 2}")
    for i in range(3, 15, 2):
        A(f"v_max3_f32 v2, v2, v{SR + i}, v{SR + i + 1}")
    A(f"v_max_f32 v2, v2, v{SR + 15}")
    A("v_mov_b32 v3, v2")
    A("s_nop 1")
    A("v_permlane32_swap_b32 v2, v3")
    A("s_nop 1")
    A("v_max_f32 v2, v2, v3")
    A("v_mov_b32 v3, v2")
    A("s_nop 1")
    A("v_permlane16_swap_b32 v2, v3")
    A("s_nop 1")
    A("v_max_f32 v2, v2, v3")
    A("v_mul_f32 v2, s40, v2")
    for i in range(16):
        A(f"v_fma_f32 v{SR + i}, v{SR + i}, s40, -v2")
    for i in range(16):
        A(f"v_exp_f32 v{SR + i}, v{SR + i}")
    A("s_nop 0")
    for u in range(8):
        A(f"v_cvt_pk_bf16_f32 v{PP + u}, v{SR + 2 * u}, v{SR + 2 * u + 1}")
    A(f"v_add_f32 v3, v{SR}, v{SR + 1}")
    A(f"v_add_f32 v6, v{SR + 2}, v{SR + 3}")
    for i in range(4, 16, 2):
        A(f"v_add_f32 v3, v3, v{SR + i}")
        A(f"v_add_f32 v6, v6, v{SR + i + 1}")
    A("v_add_f32 v3, v3, v6")
    A("v_mov_b32 v6, v3")
    A("s_nop 1")
    A("v_permlane32_swap_b32 v3, v6")
    A("s_nop 1")
    A("v_add_f32 v3, v3, v6")
    A("v_mov_b32 v6, v3")
    A("s_nop 1")
    A("v_permlane16_swap_b32 v3, v6")
    A("s_nop 1")
    A("v_add_f32 v3, v3, v6")
    A("v_lshlrev_b32 v6, 5, v1")
    A("s_lshl_b32 s43, s7, 2")
    A(f"s_add_u32 s43, s43, {L_ST}")
    A("v_add_u32 v6, s43, v6")
    A("s_mov_b64 exec, 15")
    A("ds_write_b32 v6, v2")
    A("ds_write_b32 v6, v3 offset:128")
    A("s_mov_b64 exec, -1")
    for G in range(2):
        for u in range(4):
            A(f"s_waitcnt vmcnt({15 - (8 * G + 2 * u + 1)})")
            r0 = VR + (8 * G + 2 * u) * 4
            r1 = r0 + 4
            for t in range(8):
                sel = "s41" if (t & 1) == 0 else "s42"
                A(f"v_perm_b32 v{VT + 4 * t + u}, v{r1 + (t >> 1)}, v{r0 + (t >> 1)}, {sel}")
        A("s_nop 1")
        for t in range(8):
            c = "0" if G == 0 else f"v[{ACC + 4 * t}:{ACC + 4 * t + 3}]"
            A(f"v_mfma_f32_16x16x32_bf16 v[{ACC + 4 * t}:{ACC + 4 * t + 3}], v[{VT + 4 * t}:{VT + 4 * t + 3}], v[{PP + 4 * G}:{PP + 4 * G + 3}], {c}")
    stamp(4)
    A("s_mov_b32 exec_lo, 0x000f000f")
    A("s_mov_b32 exec_hi, 0x000f000f")
    A("s_nop 0")
    for t in range(8):
        if t == 7:
            A("s_nop 0")
        A(f"ds_write_b128 v5, v[{ACC + 4 * t}:{ACC + 4 * t + 3}] offset:{16 * t}")
    A("s_mov_b64 exec, -1")
    A("s_waitcnt lgkmcnt(0)")
    A("s_barrier")
    stamp(5)
    dump_stamps(6)
    A("s_endpgm")

    A.label("L_helper")
    W, XF, HT, HACC = 8, 40, 44, 76
    TG = 108
    A("v_mov_b32 v8, 0")
    A("v_mov_b32 v9, 0")
    A("v_mov_b32 v10, 0")
    A("v_mov_b32 v11, 0")
    A("s_cmp_lg_u32 s6, 0")
    A("s_cbranch_scc1 L_noinit")
    A("ds_write_b128 v2, v[8:11]")
    A.label("L_noinit")
    A("s_lshr_b32 s27, s26, 2")
    A("s_and_b32 s52, s26, 3")
    A("v_and_b32 v5, 15, v1")
    A("v_and_b32 v2, 7, v1")
    A("v_lshlrev_b32 v2, 10, v2")
    A("v_lshl_add_u32 v2, v4, 4, v2")
    A("s_lshl_b32 s53, s52, 7")
    A("s_lshl_b32 s54, s6, 5")
    A("s_add_u32 s53, s53, s54")
    A("s_lshl_b32 s54, s53, 1")
    A("v_lshlrev_b32 v3, 16, v4")
    A("v_lshl_add_u32 v3, v5, 4, v3")
    A("s_lshl_b32 s56, s53, 13")
    A("s_lshl_b32 s55, s27, 8")
    A("s_add_u32 s56, s56, s55")
    A("s_lshl_b32 s57, s3, 8")
    A(f"s_add_u32 s57, s57, {EP}")
    A("s_waitcnt lgkmcnt(0)")
    srd(28, 8, 8192)
    srd(32, 14, 4194304)
    A(f"buffer_load_dwordx4 v[{XF}:{XF + 3}], v2, s[28:31], s54 offen")
    for e in range(8):
        A(f"buffer_load_dwordx4 v[{W + 4 * e}:{W + 4 * e + 3}], v3, s[32:35], s56 offen {ldflag}")
        if e < 7:
            A("s_add_u32 s56, s56, 8192")
    A("s_barrier")
    A("s_load_dwordx2 s[62:63], s[24:25], s57")
    srd(36, 16, 4194304)
    srd(44, 20, 16384)
    srd(48, 24, WS_BYTES)
    A("v_lshlrev_b32 v6, 4, v1")
    A("s_lshl_b32 s56, s2, 11")
    A("s_lshl_b32 s55, s6, 9")
    A("s_add_u32 s56, s56, s55")
    A(f"s_add_u32 s56, s56, {OB}")
    A("s_lshl_b32 s57, s2, 6")
    A("s_lshl_b32 s55, s6, 4")
    A("s_add_u32 s57, s57, s55")
    A(f"s_add_u32 s57, s57, {OW}")
    A("s_mov_b32 s58, 0x05040100")
    A("s_mov_b32 s59, 0x07060302")
    A("s_mov_b32 s64, 0xfffffc00")
    A("s_waitcnt lgkmcnt(0)")
    A("s_add_u32 s62, s62, 1")
    A("s_addc_u32 s63, s63, 0")
    A("s_and_b32 s54, s62, 0x3ff")
    A(f"v_mov_b32 v{TG}, s54")
    A("s_bfe_u32 s54, s62, 0xa000a")
    A(f"v_mov_b32 v{TG + 1}, s54")
    A("s_bfe_u32 s54, s62, 0xa0014")
    A(f"v_mov_b32 v{TG + 2}, s54")
    A("s_lshr_b64 s[54:55], s[62:63], 30")
    A("s_and_b32 s54, s54, 0x3ff")
    A(f"v_mov_b32 v{TG + 3}, s54")

    def transpose(first_wait):
        for u in range(4):
            if first_wait is not None:
                A(f"s_waitcnt vmcnt({first_wait - (2 * u + 1)})")
            r0 = W + 8 * u
            r1 = r0 + 4
            for t in range(8):
                sel = "s58" if (t & 1) == 0 else "s59"
                A(f"v_perm_b32 v{HT + 4 * t + u}, v{r1 + (t >> 1)}, v{r0 + (t >> 1)}, {sel}")

    def do_mfma(bop):
        for t in range(8):
            A(f"v_mfma_f32_16x16x32_bf16 v[{HACC + 4 * t}:{HACC + 4 * t + 3}], v[{HT + 4 * t}:{HT + 4 * t + 3}], v[{bop}:{bop + 3}], 0")

    def tag4(r):
        for i in range(4):
            A(f"v_bfi_b32 v{r + i}, s64, v{r + i}, v{TG + i}")

    def check(regs4, tmp):
        n = 0
        for r in regs4:
            for i in range(4):
                A(f"v_xor_b32 v{tmp + n}, v{r + i}, v{TG + i}")
                n += 1
        live = list(range(tmp, tmp + n))
        while len(live) > 1:
            nxt = []
            while len(live) >= 3:
                a, b, c = live[:3]
                live = live[3:]
                A(f"v_or3_b32 v{a}, v{a}, v{b}, v{c}")
                nxt.append(a)
            if len(live) == 2 and not nxt:
                A(f"v_or_b32 v{live[0]}, v{live[0]}, v{live[1]}")
                nxt.append(live[0])
                live = []
            live = nxt + live
        A(f"v_and_b32 v{live[0]}, 0x3ff, v{live[0]}")
        A(f"v_cmp_ne_u32 vcc, 0, v{live[0]}")

    def poll(name, loads, regs4, tmp, levels=()):
        A(f"s_mov_b32 s60, {SPIN_MAX}")
        A.label(f"L_poll_{name}")
        loads()
        A("s_waitcnt vmcnt(0)")
        check(regs4, tmp)
        A(f"s_cbranch_vccz L_ok_{name}")
        A("s_mov_b64 exec, vcc")
        if levels:
            A("s_bcnt1_i32_b64 s61, vcc")
            for i, (mn, sl) in enumerate(levels):
                A(f"s_cmp_lt_u32 s61, {mn}")
                A(f"s_cbranch_scc1 L_lv_{name}_{i}")
                A(f"s_sleep {sl}")
                A(f"s_branch L_lvd_{name}")
                A.label(f"L_lv_{name}_{i}")
            A.label(f"L_lvd_{name}")
        A("s_sub_u32 s60, s60, 1")
        A("s_cmp_lg_u32 s60, 0")
        A(f"s_cbranch_scc1 L_poll_{name}")
        A.label(f"L_ok_{name}")
        A("s_mov_b64 exec, -1")

    transpose(7)
    stamp(1)
    A("v_mul_u32_u24 v7, 528, v5")
    A("v_lshl_add_u32 v7, v4, 7, v7")
    A(f"s_mul_i32 s54, s6, {QR_W}")
    A(f"s_add_u32 s54, s54, {L_QR}")
    A("v_add_u32 v7, s54, v7")
    do_mfma(XF)
    A("v_lshrrev_b32 v2, 5, v1")
    A("s_lshl_b32 s54, s6, 1")
    A("v_add_u32 v2, s54, v2")
    A("v_and_b32 v3, 31, v1")
    A("v_mul_u32_u24 v112, 528, v2")
    A("v_lshl_add_u32 v112, v3, 4, v112")
    A(f"v_add_u32 v112, {L_QR}, v112")

    def reduce_helpers(sync):
        A("s_mov_b32 exec_lo, 0x00ff00ff")
        A("s_mov_b32 exec_hi, 0x00ff00ff")
        for t in range(8):
            A(f"ds_write_b128 v7, v[{HACC + 4 * t}:{HACC + 4 * t + 3}] offset:{16 * t}")
        A("s_mov_b64 exec, -1")
        A("s_waitcnt lgkmcnt(0)")
        sync()
        for w in range(4):
            A(f"ds_read_b128 v[{116 + 4 * w}:{119 + 4 * w}], v112 offset:{w * QR_W}")
        A("s_waitcnt lgkmcnt(0)")
        for i in range(4):
            A(f"v_add_f32 v{116 + i}, v{116 + i}, v{120 + i}")
            A(f"v_add_f32 v{124 + i}, v{124 + i}, v{128 + i}")
        for i in range(4):
            A(f"v_add_f32 v{116 + i}, v{116 + i}, v{124 + i}")

    def sync_c1():
        A("v_mov_b32 v113, 1")
        A(f"v_mov_b32 v114, {L_C1}")
        A("s_mov_b64 exec, 1")
        A("ds_add_u32 v114, v113")
        A("s_mov_b64 exec, -1")
        lds_wait_ge(114, 113, 4, sleep=0)

    A("s_nop 1")
    reduce_helpers(sync_c1)
    tag4(116)
    A("v_lshlrev_b32 v113, 16, v2")
    A("v_lshl_add_u32 v113, v3, 4, v113")
    A("s_lshl_b32 s54, s3, 19")
    A("s_lshl_b32 s55, s27, 11")
    A("s_add_u32 s54, s54, s55")
    A("s_lshl_b32 s55, s52, 9")
    A("s_add_u32 s54, s54, s55")
    if QP:
        A(f"s_add_u32 s54, s54, {QP}")
    A("buffer_store_dwordx4 v[116:119], v113, s[48:51], s54 offen sc1")
    stamp(2)
    A("s_lshr_b32 s54, s26, 1")
    A("s_lshl_b32 s54, s54, 13")
    A("s_lshl_b32 s55, s3, 19")
    A("s_add_u32 s54, s54, s55")
    A("s_lshl_b32 s55, s6, 11")
    A("s_add_u32 s54, s54, s55")
    if QP:
        A(f"s_add_u32 s54, s54, {QP}")
    A("v_lshrrev_b32 v113, 5, v1")
    A("v_lshlrev_b32 v113, 10, v113")
    A("v_lshl_add_u32 v113, v3, 4, v113")
    A("v_lshrrev_b32 v114, 3, v3")
    A("v_lshlrev_b32 v114, 6, v114")
    A("v_and_b32 v115, 7, v3")
    A("v_lshl_add_u32 v114, v115, 1, v114")
    A("s_lshl_b32 s55, s6, 8")
    A(f"s_add_u32 s55, s55, {L_QL}")
    A("v_add_u32 v114, s55, v114")
    if q_sleep0:
        A(f"s_sleep {q_sleep0}")

    def qloads():
        A("buffer_load_dwordx4 v[120:123], v113, s[48:51], s54 offen sc1")
        A("buffer_load_dwordx4 v[124:127], v113, s[48:51], s54 offen offset:512 sc1")
    poll("q", qloads, [120, 124], 128, levels=[(1, q_sleep)] if q_sleep else ())
    stamp(3)
    for i in range(4):
        A(f"v_add_f32 v{120 + i}, v{120 + i}, v{124 + i}")
    for i in range(4):
        A(f"v_mov_b32 v{124 + i}, v{120 + i}")
    A("s_nop 1")
    for i in range(4):
        A(f"v_permlane32_swap_b32 v{120 + i}, v{124 + i}")
    A("s_nop 1")
    for i in range(4):
        A(f"v_add_f32 v{120 + i}, v{120 + i}, v{124 + i}")
    A("v_cvt_pk_bf16_f32 v120, v120, v121")
    A("v_cvt_pk_bf16_f32 v122, v122, v123")
    A("s_mov_b32 exec_hi, 0")
    A("ds_write_b16 v114, v120")
    A("ds_write_b16_d16_hi v114, v120 offset:16")
    A("ds_write_b16 v114, v122 offset:32")
    A("ds_write_b16_d16_hi v114, v122 offset:48")
    A("s_waitcnt lgkmcnt(0)")
    A("v_mov_b32 v113, 1")
    A(f"v_mov_b32 v114, {L_C3}")
    A("s_mov_b64 exec, 1")
    A("ds_add_u32 v114, v113")
    A("s_mov_b64 exec, -1")
    stamp(4)
    if wo_gate:
        A(f"v_mov_b32 v114, {L_C4}")
        lds_wait_ge(114, 113, 8, sleep=2)
    A("v_lshlrev_b32 v113, 11, v4")
    A("v_lshl_add_u32 v113, v5, 4, v113")
    A("s_lshl_b32 s54, s27, 7")
    A("s_lshl_b32 s55, s6, 5")
    A("s_add_u32 s54, s54, s55")
    A("s_lshl_b32 s54, s54, 10")
    A("s_lshl_b32 s55, s52, 8")
    A("s_add_u32 s54, s54, s55")
    for e in range(8):
        A(f"s_add_u32 s55, s54, {8 * (e & 3) * 1024}")
        A(f"buffer_load_dwordx4 v[{W + 4 * e}:{W + 4 * e + 3}], v113, s[36:39], s55 offen offset:{(e >> 2) * 1024} {ldflag}")
    stamp(5)
    A("s_mul_i32 s54, s6, 528")
    A(f"s_add_u32 s54, s54, {L_AP}")
    A("v_lshlrev_b32 v113, 4, v3")
    A("v_add_u32 v113, s54, v113")
    A("s_lshl_b32 s54, s6, 5")
    A(f"s_add_u32 s54, s54, {L_ST}")
    A("v_mov_b32 v114, s54")
    A("s_barrier")
    stamp(6)
    CB = 116
    A(f"ds_read_b128 v[{CB}:{CB + 3}], v114")
    A(f"ds_read_b128 v[{CB + 4}:{CB + 7}], v114 offset:16")
    A(f"ds_read_b128 v[{CB + 8}:{CB + 11}], v114 offset:128")
    A(f"ds_read_b128 v[{CB + 12}:{CB + 15}], v114 offset:144")
    for a in range(8):
        A(f"ds_read_b128 v[{HACC + 4 * a}:{HACC + 4 * a + 3}], v113 offset:{a * AP_A}")
    A("s_waitcnt lgkmcnt(10)" if not instr else "s_waitcnt lgkmcnt(0)")
    A(f"v_max3_f32 v115, v{CB}, v{CB + 1}, v{CB + 2}")
    A(f"v_max3_f32 v115, v115, v{CB + 3}, v{CB + 4}")
    A(f"v_max3_f32 v115, v115, v{CB + 5}, v{CB + 6}")
    A(f"v_max_f32 v115, v115, v{CB + 7}")
    for a in range(8):
        A(f"v_sub_f32 v{CB + a}, v{CB + a}, v115")
    for a in range(8):
        A(f"v_exp_f32 v{CB + a}, v{CB + a}")
    A("s_waitcnt lgkmcnt(8)" if not instr else "s_waitcnt lgkmcnt(0)")
    A(f"v_mul_f32 v132, v{CB}, v{CB + 8}")
    for a in range(1, 8):
        A(f"v_fmac_f32 v132, v{CB + a}, v{CB + 8 + a}")
    A("v_rcp_f32 v133, v132")
    A("v_log_f32 v134, v132")
    A("s_waitcnt lgkmcnt(0)")
    for i in range(4):
        A(f"v_mul_f32 v{136 + i}, v{CB}, v{HACC + i}")
    for a in range(1, 8):
        for i in range(4):
            A(f"v_fmac_f32 v{136 + i}, v{CB + a}, v{HACC + 4 * a + i}")
    A("v_add_f32 v134, v134, v115")
    for i in range(4):
        A(f"v_mul_f32 v{136 + i}, v133, v{136 + i}")
    tag4(136)
    A("v_and_b32 v135, s64, v134")
    A("v_sub_f32 v135, v134, v135")
    A(f"v_bfi_b32 v140, s64, v134, v{TG}")
    A(f"v_bfi_b32 v141, s64, v135, v{TG + 1}")
    A(f"v_bfi_b32 v142, s64, v134, v{TG + 2}")
    A(f"v_bfi_b32 v143, s64, v134, v{TG + 3}")
    A("s_mov_b32 exec_hi, 0")
    A("buffer_store_dwordx4 v[136:139], v6, s[48:51], s56 offen sc1")
    A("s_mov_b64 exec, 1")
    A("buffer_store_dwordx4 v[140:143], v6, s[48:51], s57 offen sc1")
    A("s_mov_b64 exec, -1")
    stamp(7)
    A("v_and_b32 v113, 7, v1")
    A("v_lshlrev_b32 v113, 4, v113")
    A("v_bfe_u32 v114, v1, 3, 1")
    A("v_add_u32 v113, v113, v114")
    A("s_lshr_b32 s54, s27, 2")
    A("s_lshl_b32 s54, s54, 1")
    A("s_lshl_b32 s55, s3, 7")
    A("s_add_u32 s54, s54, s55")
    A("v_add_u32 v113, s54, v113")
    A("v_lshlrev_b32 v114, 6, v113")
    A("v_lshlrev_b32 v113, 11, v113")
    A("v_lshl_add_u32 v113, v4, 5, v113")
    A("s_and_b32 s55, s27, 3")
    A("s_lshl_b32 s54, s55, 9")
    A("s_lshl_b32 s53, s6, 7")
    A("s_add_u32 s54, s54, s53")
    A(f"s_add_u32 s54, s54, {OB}")
    A("s_lshl_b32 s55, s55, 4")
    A(f"s_add_u32 s55, s55, {OW}")
    transpose(9)
    stamp(8)

    def oloads():
        A("buffer_load_dwordx4 v[116:119], v113, s[48:51], s54 offen sc1")
        A("buffer_load_dwordx4 v[120:123], v113, s[48:51], s54 offen offset:16 sc1")
        A("buffer_load_dwordx4 v[124:127], v114, s[48:51], s55 offen sc1")
    poll("o", oloads, [116, 120, 124], 128, levels=o_levels)
    stamp(9)
    A("v_and_b32 v124, s64, v124")
    A("v_add_f32 v124, v124, v125")
    A("s_nop 1")
    A("v_mov_b32_dpp v125, v124 row_ror:8 row_mask:0xf bank_mask:0xf")
    A("v_sub_f32 v125, v125, v124")
    A("v_exp_f32 v125, v125")
    A("s_nop 0")
    A("v_add_f32 v125, 1.0, v125")
    A("v_rcp_f32 v125, v125")
    A("s_nop 0")
    for i in range(8):
        A(f"v_mul_f32 v{116 + i}, v125, v{116 + i}")
    for i in range(8):
        A(f"v_add_f32_dpp v{128 + i}, v{116 + i}, v{116 + i} row_ror:8 row_mask:0xf bank_mask:0xf")
    for u in range(4):
        A(f"v_cvt_pk_bf16_f32 v{XF + u}, v{128 + 2 * u}, v{128 + 2 * u + 1}")
    A("s_nop 1")
    do_mfma(XF)
    A("v_lshlrev_b32 v113, 2, v2")
    A("v_lshrrev_b32 v114, 3, v3")
    A("v_add_u32 v113, v113, v114")
    A("v_lshlrev_b32 v113, 12, v113")
    A("v_and_b32 v114, 7, v3")
    A("v_lshl_add_u32 v113, v114, 4, v113")
    A("s_lshl_b32 s54, s3, 19")
    A("s_lshl_b32 s55, s52, 17")
    A("s_add_u32 s54, s54, s55")
    A("s_lshl_b32 s55, s27, 7")
    A("s_add_u32 s54, s54, s55")
    A(f"s_add_u32 s54, s54, {PB}")
    reduce_helpers(lambda: A("s_barrier"))
    tag4(116)
    A("buffer_store_dwordx4 v[116:119], v113, s[48:51], s54 offen sc1")
    stamp(10)
    A("s_cmp_lg_u32 s6, 0")
    A("s_cbranch_scc1 L_hend")
    A("s_lshl_b32 s54, s2, 12")
    A(f"s_add_u32 s54, s54, {PB}")

    def ploads():
        for i in range(4):
            A(f"buffer_load_dwordx4 v[{8 + 4 * i}:{11 + 4 * i}], v6, s[48:51], s54 offen offset:{1024 * i} sc1")
    poll("p", ploads, [8, 12, 16, 20], 24, levels=p_levels)
    stamp(11)
    for i in range(4):
        A(f"v_add_f32 v{8 + i}, v{8 + i}, v{12 + i}")
        A(f"v_add_f32 v{16 + i}, v{16 + i}, v{20 + i}")
    for i in range(4):
        A(f"v_add_f32 v{8 + i}, v{8 + i}, v{16 + i}")
    A("s_nop 1")
    for i in range(4):
        A(f"v_add_f32_dpp v{12 + i}, v{8 + i}, v{8 + i} row_ror:8 row_mask:0xf bank_mask:0xf")
    for i in range(4):
        A(f"v_mov_b32 v{8 + i}, v{12 + i}")
    A("s_nop 1")
    for i in range(4):
        A(f"v_permlane16_swap_b32 v{8 + i}, v{12 + i}")
    A("s_nop 1")
    for i in range(4):
        A(f"v_add_f32 v{12 + i}, v{8 + i}, v{12 + i}")
    for i in range(4):
        A(f"v_mov_b32 v{8 + i}, v{12 + i}")
    A("s_nop 1")
    for i in range(4):
        A(f"v_permlane32_swap_b32 v{8 + i}, v{12 + i}")
    A("s_nop 1")
    for i in range(4):
        A(f"v_add_f32 v{12 + i}, v{8 + i}, v{12 + i}")
    A("v_bfe_u32 v16, v1, 3, 2")
    A("v_cmp_eq_u32 vcc, 1, v16")
    A("s_nop 1")
    A("v_cndmask_b32 v12, v12, v13, vcc")
    A("v_cmp_eq_u32 vcc, 2, v16")
    A("s_nop 1")
    A("v_cndmask_b32 v12, v12, v14, vcc")
    A("v_cmp_eq_u32 vcc, 3, v16")
    A("s_nop 1")
    A("v_cndmask_b32 v12, v12, v15, vcc")
    A("v_cvt_pk_bf16_f32 v12, v12, v12")
    A("s_bfe_u32 s54, s26, 0x30002")
    A("s_lshl_b32 s54, s54, 11")
    A("s_lshl_b32 s55, s3, 10")
    A("s_add_u32 s54, s54, s55")
    A("s_lshr_b32 s55, s26, 5")
    A("s_lshl_b32 s55, s55, 8")
    A("s_add_u32 s54, s54, s55")
    A("s_and_b32 s55, s26, 3")
    A("s_lshl_b32 s55, s55, 6")
    A("s_add_u32 s54, s54, s55")
    A("v_lshlrev_b32 v16, 1, v1")
    A("s_mov_b32 exec_hi, 0")
    A("buffer_store_short v12, v16, s[44:47], s54 offen")
    A("s_cmp_lg_u32 s26, 0")
    A("s_cbranch_scc1 L_noep")
    A("s_mov_b64 exec, 1")
    A("v_mov_b32 v18, s62")
    A("v_mov_b32 v19, s63")
    A("s_lshl_b32 s54, s3, 8")
    A(f"s_add_u32 s54, s54, {EP}")
    A("buffer_store_dwordx2 v[18:19], v16, s[48:51], s54 offen")
    A.label("L_noep")
    A("s_mov_b64 exec, -1")
    stamp(12)
    A.label("L_hend")
    dump_stamps(13)
    A.label("L_end")
    A("s_endpgm")

    out = [HEADER.rstrip("\n")]
    out.append(f"; @launch grid=(256,1,1) block=(768,1,1) lds={LDS_BYTES}")
    out.append('.amdgcn_target "amdgcn-amd-amdhsa--gfx950"')
    out.append(".text")
    out.append(f".globl {NAME}")
    out.append(".p2align 8")
    out.append(f".type {NAME},@function")
    out += A.L
    out.append('.section .rodata,"a"')
    out.append(".p2align 6")
    out.append(f".amdhsa_kernel {NAME}")
    out.append("  .amdhsa_next_free_vgpr 168")
    out.append("  .amdhsa_next_free_sgpr 96")
    out.append("  .amdhsa_accum_offset 168")
    out.append("  .amdhsa_group_segment_fixed_size 0")
    out.append("  .amdhsa_kernarg_size 104")
    out.append("  .amdhsa_user_sgpr_count 2")
    out.append("  .amdhsa_user_sgpr_kernarg_segment_ptr 1")
    out.append("  .amdhsa_system_sgpr_workgroup_id_x 1")
    out.append(".end_amdhsa_kernel")
    return "\n".join(out) + "\n"


if __name__ == "__main__":
    import argparse
    ap = argparse.ArgumentParser()
    ap.add_argument("-o", default="concat_heads__sliding_block_cached__sliding_block_cached__decode.s")
    ap.add_argument("--instr", action="store_true")
    ap.add_argument("--ldflag", default="nt")
    ap.add_argument("--no-wo-gate", action="store_true")
    ap.add_argument("--q-sleep0", type=int, default=0)
    ap.add_argument("--q-sleep", type=int, default=4)
    ap.add_argument("--o-levels", default="32:16,9:4")
    ap.add_argument("--p-levels", default="32:16,9:4")
    a = ap.parse_args()
    def lv(x):
        return [tuple(int(v) for v in p.split(":")) for p in x.split(",") if p]
    open(a.o, "w").write(gen(instr=a.instr, ldflag=a.ldflag, wo_gate=not a.no_wo_gate,
                             q_sleep0=a.q_sleep0, q_sleep=a.q_sleep,
                             o_levels=lv(a.o_levels), p_levels=lv(a.p_levels)))
```

```python
import sys, math, struct

NAME = "concat_heads__sliding_block_cached__sliding_block_cached__decode_kernel"

HEADER = """; Kernarg layout for this problem (104 bytes, ptrs only, base s[0:1]):
"""

def f32bits(x):
    return struct.unpack("<I", struct.pack("<f", x))[0]

C_SCALE = f32bits(math.log2(math.e) / math.sqrt(128.0))

QP = 0x000000
OB = 0x100000
OW = 0x180000
PB = 0x200000
EP = 0x300000
TS = 0x400000
WS_BYTES = 285229056

L_C1, L_C3, L_C4 = 0, 8, 12
L_QL = 64
L_ST = 1088
L_QR = 1536
QR_W = 4224
L_AP = L_QR + 4 * QR_W
AP_A = 2112
LDS_BYTES = L_AP + 8 * AP_A

SPIN_MAX = 1 << 20


class Asm:
    def __init__(self):
        self.L = []
        self.nlab = 0

    def __call__(self, s):
        self.L.append("    " + s)

    def label(self, s):
        self.L.append(s + ":")

    def newlabel(self, pfx="L"):
        self.nlab += 1
        return f"{pfx}_{self.nlab}"


def gen(dbgtime=False, instr=False, ldflag="nt", wo_gate=True, prio=False, q_sleep0=0, q_sleep=4, o_levels=((32, 16), (9, 4)), p_levels=((32, 16), (9, 4))):
    A = Asm()

    def stamp(slot):
        if instr:
            A(f"s_memrealtime s[{66 + 2 * slot}:{67 + 2 * slot}]")

    def srd(d, lo, nbytes):
        A(f"s_mov_b32 s{d}, s{lo}")
        A(f"s_and_b32 s{d + 1}, s{lo + 1}, 0xffff")
        A(f"s_mov_b32 s{d + 2}, {nbytes}")
        A(f"s_mov_b32 s{d + 3}, 0x20000")

    def lds_wait_ge(addr_v, tmp_v, val, sleep=1):
        lab = A.newlabel("L_lw")
        done = A.newlabel("L_lwd")
        A(f"s_mov_b32 s60, {SPIN_MAX}")
        A.label(lab)
        A(f"ds_read_b32 v{tmp_v}, v{addr_v}")
        A("s_waitcnt lgkmcnt(0)")
        A(f"v_readfirstlane_b32 s61, v{tmp_v}")
        A(f"s_cmp_ge_u32 s61, {val}")
        A(f"s_cbranch_scc1 {done}")
        if sleep:
            A(f"s_sleep {sleep}")
        A("s_sub_u32 s60, s60, 1")
        A("s_cmp_lg_u32 s60, 0")
        A(f"s_cbranch_scc1 {lab}")
        A.label(done)

    def dump_stamps(nslots):
        if dbgtime:
            if nslots < 13:
                return
            A("s_cmp_lg_u32 s6, 0")
            A("s_cbranch_scc1 L_end")
            A("s_load_dwordx2 s[22:23], s[0:1], 88")
            A("s_waitcnt lgkmcnt(0)")
            srd(40, 22, 256)
            A("s_mov_b64 exec, 1")
            A("v_mov_b32 v1, 0")
            A("s_not_b32 s60, s66")
            A("v_mov_b32 v2, s60")
            A("buffer_atomic_umax v2, v1, s[40:43], 0 offen")
            for i in range(1, nslots):
                A(f"v_mov_b32 v{2 + i}, s{66 + 2 * i}")
                A(f"buffer_atomic_umax v{2 + i}, v1, s[40:43], 0 offen offset:{4 * i}")
            return
        if not instr:
            return
        A("s_waitcnt lgkmcnt(0)")
        A("s_mul_i32 s60, s2, 12")
        A("s_add_u32 s60, s60, s6")
        A("s_lshl_b32 s60, s60, 7")
        A(f"s_add_u32 s60, s60, {TS}")
        A("s_mov_b64 exec, 1")
        A("v_mov_b32 v1, 0")
        for i in range(nslots):
            A(f"v_mov_b32 v2, s{66 + 2 * i}")
            A(f"v_mov_b32 v3, s{67 + 2 * i}")
            A(f"buffer_store_dwordx2 v[2:3], v1, s[48:51], s60 offen offset:{8 * i}")
            A("s_nop 1")
        A("s_mov_b64 exec, -1")

    A.label(NAME)
    stamp(0)
    A("s_cmp_ge_u32 s2, 256")
    A("s_cbranch_scc1 L_end")
    A("s_lshr_b32 s3, s2, 7")
    A("s_mul_i32 s4, s3, 40")
    A("s_add_u32 s4, s0, s4")
    A("s_addc_u32 s5, s1, 0")
    A("s_load_dwordx8 s[8:15], s[4:5], 0")
    A("s_load_dwordx2 s[16:17], s[4:5], 32")
    A("s_load_dwordx2 s[20:21], s[0:1], 80")
    A("s_load_dwordx2 s[24:25], s[0:1], 96")
    A("v_lshrrev_b32 v1, 6, v0")
    A("v_mov_b32 v2, 0")
    A("v_readfirstlane_b32 s6, v1")
    A("v_and_b32 v1, 63, v0")
    A("s_and_b32 s26, s2, 127")
    A("v_lshrrev_b32 v4, 4, v1")
    A("s_cmp_lt_u32 s6, 4")
    A("s_cbranch_scc1 L_helper")

    KR, VR, QF, SR = 8, 72, 136, 152
    ACC, VT, PP = 8, 40, 136
    A("s_sub_u32 s7, s6, 4")
    A("s_lshr_b32 s36, s26, 1")
    A("s_lshl_b32 s36, s36, 20")
    A("s_and_b32 s37, s26, 1")
    A("s_lshl_b32 s37, s37, 17")
    A("s_add_u32 s36, s36, s37")
    A("s_lshl_b32 s37, s7, 14")
    A("s_add_u32 s36, s36, s37")
    A("s_add_u32 s36, s36, 786432")
    A("s_add_u32 s37, s36, 4096")
    A("s_add_u32 s38, s36, 8192")
    A("s_add_u32 s39, s36, 12288")
    A("v_and_b32 v2, 3, v1")
    A("v_lshlrev_b32 v2, 10, v2")
    A("v_bfe_u32 v3, v1, 2, 2")
    A("v_lshl_add_u32 v2, v3, 8, v2")
    A("v_lshl_add_u32 v2, v4, 4, v2")
    A("v_lshlrev_b32 v3, 4, v1")
    A("s_waitcnt lgkmcnt(0)")
    srd(28, 10, 67108864)
    srd(32, 12, 67108864)
    if instr:
        srd(48, 24, WS_BYTES)
    A("s_barrier")
    for T in range(4):
        for kk in range(4):
            r = KR + (T * 4 + kk) * 4
            A(f"buffer_load_dwordx4 v[{r}:{r + 3}], v2, s[28:31], s{36 + T} offen offset:{kk * 64} {ldflag}")
    for i in range(16):
        r = VR + i * 4
        A(f"buffer_load_dwordx4 v[{r}:{r + 3}], v3, s[32:35], s{36 + i // 4} offen offset:{(i % 4) * 1024} {ldflag}")
    stamp(1)
    A("v_mov_b32 v5, 1")
    A(f"v_mov_b32 v6, {L_C4}")
    A("s_mov_b64 exec, 1")
    A("ds_add_u32 v6, v5")
    A("s_mov_b64 exec, -1")
    A("v_and_b32 v7, 3, v1")
    A("v_lshlrev_b32 v7, 8, v7")
    A("v_lshl_add_u32 v7, v4, 4, v7")
    A(f"v_mov_b32 v6, {L_C3}")
    lds_wait_ge(6, 5, 4, sleep=2)
    stamp(2)
    for kk in range(4):
        A(f"ds_read_b128 v[{QF + 4 * kk}:{QF + 4 * kk + 3}], v7 offset:{L_QL + kk * 64}")
    A(f"s_mov_b32 s40, {C_SCALE}")
    A("s_mov_b32 s41, 0x05040100")
    A("s_mov_b32 s42, 0x07060302")
    A("s_waitcnt lgkmcnt(0)")
    for T in range(4):
        A(f"s_waitcnt vmcnt({28 - 4 * T})")
        for kk in range(4):
            r = KR + (T * 4 + kk) * 4
            c = "0" if kk == 0 else f"v[{SR + 4 * T}:{SR + 4 * T + 3}]"
            A(f"v_mfma_f32_16x16x32_bf16 v[{SR + 4 * T}:{SR + 4 * T + 3}], v[{r}:{r + 3}], v[{QF + 4 * kk}:{QF + 4 * kk + 3}], {c}")
    stamp(3)
    A("v_and_b32 v5, 3, v1")
    A("v_mul_u32_u24 v5, 528, v5")
    A("v_lshl_add_u32 v5, v4, 7, v5")
    A(f"s_mul_i32 s43, s7, {AP_A}")
    A(f"s_add_u32 s43, s43, {L_AP}")
    A("v_add_u32 v5, s43, v5")
    A("s_nop 3")
    A(f"v_max3_f32 v2, v{SR}, v{SR + 1}, v{SR + 2}")
    for i in range(3, 15, 2):
        A(f"v_max3_f32 v2, v2, v{SR + i}, v{SR + i + 1}")
    A(f"v_max_f32 v2, v2, v{SR + 15}")
    A("v_mov_b32 v3, v2")
    A("s_nop 1")
    A("v_permlane32_swap_b32 v2, v3")
    A("s_nop 1")
    A("v_max_f32 v2, v2, v3")
    A("v_mov_b32 v3, v2")
    A("s_nop 1")
    A("v_permlane16_swap_b32 v2, v3")
    A("s_nop 1")
    A("v_max_f32 v2, v2, v3")
    A("v_mul_f32 v2, s40, v2")
    for i in range(16):
        A(f"v_fma_f32 v{SR + i}, v{SR + i}, s40, -v2")
    for i in range(16):
        A(f"v_exp_f32 v{SR + i}, v{SR + i}")
    A("s_nop 0")
    for u in range(8):
        A(f"v_cvt_pk_bf16_f32 v{PP + u}, v{SR + 2 * u}, v{SR + 2 * u + 1}")
    A(f"v_add_f32 v3, v{SR}, v{SR + 1}")
    A(f"v_add_f32 v6, v{SR + 2}, v{SR + 3}")
    for i in range(4, 16, 2):
        A(f"v_add_f32 v3, v3, v{SR + i}")
        A(f"v_add_f32 v6, v6, v{SR + i + 1}")
    A("v_add_f32 v3, v3, v6")
    A("v_mov_b32 v6, v3")
    A("s_nop 1")
    A("v_permlane32_swap_b32 v3, v6")
    A("s_nop 1")
    A("v_add_f32 v3, v3, v6")
    A("v_mov_b32 v6, v3")
    A("s_nop 1")
    A("v_permlane16_swap_b32 v3, v6")
    A("s_nop 1")
    A("v_add_f32 v3, v3, v6")
    A("v_lshlrev_b32 v6, 5, v1")
    A("s_lshl_b32 s43, s7, 2")
    A(f"s_add_u32 s43, s43, {L_ST}")
    A("v_add_u32 v6, s43, v6")
    A("s_mov_b64 exec, 15")
    A("ds_write_b32 v6, v2")
    A("ds_write_b32 v6, v3 offset:128")
    A("s_mov_b64 exec, -1")
    for G in range(2):
        for u in range(4):
            A(f"s_waitcnt vmcnt({15 - (8 * G + 2 * u + 1)})")
            r0 = VR + (8 * G + 2 * u) * 4
            r1 = r0 + 4
            for t in range(8):
                sel = "s41" if (t & 1) == 0 else "s42"
                A(f"v_perm_b32 v{VT + 4 * t + u}, v{r1 + (t >> 1)}, v{r0 + (t >> 1)}, {sel}")
        A("s_nop 1")
        for t in range(8):
            c = "0" if G == 0 else f"v[{ACC + 4 * t}:{ACC + 4 * t + 3}]"
            A(f"v_mfma_f32_16x16x32_bf16 v[{ACC + 4 * t}:{ACC + 4 * t + 3}], v[{VT + 4 * t}:{VT + 4 * t + 3}], v[{PP + 4 * G}:{PP + 4 * G + 3}], {c}")
    stamp(4)
    A("s_mov_b32 exec_lo, 0x000f000f")
    A("s_mov_b32 exec_hi, 0x000f000f")
    A("s_nop 0")
    for t in range(8):
        if t == 7:
            A("s_nop 0")
        A(f"ds_write_b128 v5, v[{ACC + 4 * t}:{ACC + 4 * t + 3}] offset:{16 * t}")
    A("s_mov_b64 exec, -1")
    A("s_waitcnt lgkmcnt(0)")
    A("s_barrier")
    stamp(5)
    dump_stamps(6)
    A("s_endpgm")

    A.label("L_helper")
    W, XF, HT, HACC = 8, 40, 44, 76
    TG = 108
    A("v_mov_b32 v8, 0")
    A("v_mov_b32 v9, 0")
    A("v_mov_b32 v10, 0")
    A("v_mov_b32 v11, 0")
    A("s_cmp_lg_u32 s6, 0")
    A("s_cbranch_scc1 L_noinit")
    A("ds_write_b128 v2, v[8:11]")
    A.label("L_noinit")
    A("s_lshr_b32 s27, s26, 2")
    A("s_and_b32 s52, s26, 3")
    A("v_and_b32 v5, 15, v1")
    A("v_and_b32 v2, 7, v1")
    A("v_lshlrev_b32 v2, 10, v2")
    A("v_lshl_add_u32 v2, v4, 4, v2")
    A("s_lshl_b32 s53, s52, 7")
    A("s_lshl_b32 s54, s6, 5")
    A("s_add_u32 s53, s53, s54")
    A("s_lshl_b32 s54, s53, 1")
    A("v_lshlrev_b32 v3, 16, v4")
    A("v_lshl_add_u32 v3, v5, 4, v3")
    A("s_lshl_b32 s56, s53, 13")
    A("s_lshl_b32 s55, s27, 8")
    A("s_add_u32 s56, s56, s55")
    A("s_lshl_b32 s57, s3, 8")
    A(f"s_add_u32 s57, s57, {EP}")
    A("s_waitcnt lgkmcnt(0)")
    srd(28, 8, 8192)
    srd(32, 14, 4194304)
    A(f"buffer_load_dwordx4 v[{XF}:{XF + 3}], v2, s[28:31], s54 offen")
    for e in range(8):
        A(f"buffer_load_dwordx4 v[{W + 4 * e}:{W + 4 * e + 3}], v3, s[32:35], s56 offen {ldflag}")
        if e < 7:
            A("s_add_u32 s56, s56, 8192")
    A("s_barrier")
    A("s_load_dwordx2 s[62:63], s[24:25], s57")
    srd(36, 16, 4194304)
    srd(44, 20, 16384)
    srd(48, 24, WS_BYTES)
    A("v_lshlrev_b32 v6, 4, v1")
    A("s_lshl_b32 s56, s2, 11")
    A("s_lshl_b32 s55, s6, 9")
    A("s_add_u32 s56, s56, s55")
    A(f"s_add_u32 s56, s56, {OB}")
    A("s_lshl_b32 s57, s2, 6")
    A("s_lshl_b32 s55, s6, 4")
    A("s_add_u32 s57, s57, s55")
    A(f"s_add_u32 s57, s57, {OW}")
    A("s_mov_b32 s58, 0x05040100")
    A("s_mov_b32 s59, 0x07060302")
    A("s_mov_b32 s64, 0xfffffc00")
    A("s_waitcnt lgkmcnt(0)")
    A("s_add_u32 s62, s62, 1")
    A("s_addc_u32 s63, s63, 0")
    A("s_and_b32 s54, s62, 0x3ff")
    A(f"v_mov_b32 v{TG}, s54")
    A("s_bfe_u32 s54, s62, 0xa000a")
    A(f"v_mov_b32 v{TG + 1}, s54")
    A("s_bfe_u32 s54, s62, 0xa0014")
    A(f"v_mov_b32 v{TG + 2}, s54")
    A("s_lshr_b64 s[54:55], s[62:63], 30")
    A("s_and_b32 s54, s54, 0x3ff")
    A(f"v_mov_b32 v{TG + 3}, s54")

    def transpose(first_wait):
        for u in range(4):
            if first_wait is not None:
                A(f"s_waitcnt vmcnt({first_wait - (2 * u + 1)})")
            r0 = W + 8 * u
            r1 = r0 + 4
            for t in range(8):
                sel = "s58" if (t & 1) == 0 else "s59"
                A(f"v_perm_b32 v{HT + 4 * t + u}, v{r1 + (t >> 1)}, v{r0 + (t >> 1)}, {sel}")

    def do_mfma(bop):
        for t in range(8):
            A(f"v_mfma_f32_16x16x32_bf16 v[{HACC + 4 * t}:{HACC + 4 * t + 3}], v[{HT + 4 * t}:{HT + 4 * t + 3}], v[{bop}:{bop + 3}], 0")

    def tag4(r):
        for i in range(4):
            A(f"v_bfi_b32 v{r + i}, s64, v{r + i}, v{TG + i}")

    def check(regs4, tmp):
        n = 0
        for r in regs4:
            for i in range(4):
                A(f"v_xor_b32 v{tmp + n}, v{r + i}, v{TG + i}")
                n += 1
        live = list(range(tmp, tmp + n))
        while len(live) > 1:
            nxt = []
            while len(live) >= 3:
                a, b, c = live[:3]
                live = live[3:]
                A(f"v_or3_b32 v{a}, v{a}, v{b}, v{c}")
                nxt.append(a)
            if len(live) == 2 and not nxt:
                A(f"v_or_b32 v{live[0]}, v{live[0]}, v{live[1]}")
                nxt.append(live[0])
                live = []
            live = nxt + live
        A(f"v_and_b32 v{live[0]}, 0x3ff, v{live[0]}")
        A(f"v_cmp_ne_u32 vcc, 0, v{live[0]}")

    def poll(name, loads, regs4, tmp, levels=()):
        A(f"s_mov_b32 s60, {SPIN_MAX}")
        A.label(f"L_poll_{name}")
        loads()
        A("s_waitcnt vmcnt(0)")
        check(regs4, tmp)
        A(f"s_cbranch_vccz L_ok_{name}")
        A("s_mov_b64 exec, vcc")
        if levels:
            A("s_bcnt1_i32_b64 s61, vcc")
            for i, (mn, sl) in enumerate(levels):
                A(f"s_cmp_lt_u32 s61, {mn}")
                A(f"s_cbranch_scc1 L_lv_{name}_{i}")
                A(f"s_sleep {sl}")
                A(f"s_branch L_lvd_{name}")
                A.label(f"L_lv_{name}_{i}")
            A.label(f"L_lvd_{name}")
        A("s_sub_u32 s60, s60, 1")
        A("s_cmp_lg_u32 s60, 0")
        A(f"s_cbranch_scc1 L_poll_{name}")
        A.label(f"L_ok_{name}")
        A("s_mov_b64 exec, -1")

    transpose(7)
    stamp(1)
    A("v_mul_u32_u24 v7, 528, v5")
    A("v_lshl_add_u32 v7, v4, 7, v7")
    A(f"s_mul_i32 s54, s6, {QR_W}")
    A(f"s_add_u32 s54, s54, {L_QR}")
    A("v_add_u32 v7, s54, v7")
    do_mfma(XF)
    A("v_lshrrev_b32 v2, 5, v1")
    A("s_lshl_b32 s54, s6, 1")
    A("v_add_u32 v2, s54, v2")
    A("v_and_b32 v3, 31, v1")
    A("v_mul_u32_u24 v112, 528, v2")
    A("v_lshl_add_u32 v112, v3, 4, v112")
    A(f"v_add_u32 v112, {L_QR}, v112")

    def reduce_helpers(sync):
        A("s_mov_b32 exec_lo, 0x00ff00ff")
        A("s_mov_b32 exec_hi, 0x00ff00ff")
        for t in range(8):
            A(f"ds_write_b128 v7, v[{HACC + 4 * t}:{HACC + 4 * t + 3}] offset:{16 * t}")
        A("s_mov_b64 exec, -1")
        A("s_waitcnt lgkmcnt(0)")
        sync()
        for w in range(4):
            A(f"ds_read_b128 v[{116 + 4 * w}:{119 + 4 * w}], v112 offset:{w * QR_W}")
        A("s_waitcnt lgkmcnt(0)")
        for i in range(4):
            A(f"v_add_f32 v{116 + i}, v{116 + i}, v{120 + i}")
            A(f"v_add_f32 v{124 + i}, v{124 + i}, v{128 + i}")
        for i in range(4):
            A(f"v_add_f32 v{116 + i}, v{116 + i}, v{124 + i}")

    def sync_c1():
        A("v_mov_b32 v113, 1")
        A(f"v_mov_b32 v114, {L_C1}")
        A("s_mov_b64 exec, 1")
        A("ds_add_u32 v114, v113")
        A("s_mov_b64 exec, -1")
        lds_wait_ge(114, 113, 4, sleep=0)

    A("s_nop 1")
    reduce_helpers(sync_c1)
    tag4(116)
    A("v_lshlrev_b32 v113, 16, v2")
    A("v_lshl_add_u32 v113, v3, 4, v113")
    A("s_lshl_b32 s54, s3, 19")
    A("s_lshl_b32 s55, s27, 11")
    A("s_add_u32 s54, s54, s55")
    A("s_lshl_b32 s55, s52, 9")
    A("s_add_u32 s54, s54, s55")
    if QP:
        A(f"s_add_u32 s54, s54, {QP}")
    A("buffer_store_dwordx4 v[116:119], v113, s[48:51], s54 offen sc1")
    stamp(2)
    A("s_lshr_b32 s54, s26, 1")
    A("s_lshl_b32 s54, s54, 13")
    A("s_lshl_b32 s55, s3, 19")
    A("s_add_u32 s54, s54, s55")
    A("s_lshl_b32 s55, s6, 11")
    A("s_add_u32 s54, s54, s55")
    if QP:
        A(f"s_add_u32 s54, s54, {QP}")
    A("v_lshrrev_b32 v113, 5, v1")
    A("v_lshlrev_b32 v113, 10, v113")
    A("v_lshl_add_u32 v113, v3, 4, v113")
    A("v_lshrrev_b32 v114, 3, v3")
    A("v_lshlrev_b32 v114, 6, v114")
    A("v_and_b32 v115, 7, v3")
    A("v_lshl_add_u32 v114, v115, 1, v114")
    A("s_lshl_b32 s55, s6, 8")
    A(f"s_add_u32 s55, s55, {L_QL}")
    A("v_add_u32 v114, s55, v114")
    if q_sleep0:
        A(f"s_sleep {q_sleep0}")

    def qloads():
        A("buffer_load_dwordx4 v[120:123], v113, s[48:51], s54 offen sc1")
        A("buffer_load_dwordx4 v[124:127], v113, s[48:51], s54 offen offset:512 sc1")
    poll("q", qloads, [120, 124], 128, levels=[(1, q_sleep)] if q_sleep else ())
    stamp(3)
    for i in range(4):
        A(f"v_add_f32 v{120 + i}, v{120 + i}, v{124 + i}")
    for i in range(4):
        A(f"v_mov_b32 v{124 + i}, v{120 + i}")
    A("s_nop 1")
    for i in range(4):
        A(f"v_permlane32_swap_b32 v{120 + i}, v{124 + i}")
    A("s_nop 1")
    for i in range(4):
        A(f"v_add_f32 v{120 + i}, v{120 + i}, v{124 + i}")
    A("v_cvt_pk_bf16_f32 v120, v120, v121")
    A("v_cvt_pk_bf16_f32 v122, v122, v123")
    A("s_mov_b32 exec_hi, 0")
    A("ds_write_b16 v114, v120")
    A("ds_write_b16_d16_hi v114, v120 offset:16")
    A("ds_write_b16 v114, v122 offset:32")
    A("ds_write_b16_d16_hi v114, v122 offset:48")
    A("s_waitcnt lgkmcnt(0)")
    A("v_mov_b32 v113, 1")
    A(f"v_mov_b32 v114, {L_C3}")
    A("s_mov_b64 exec, 1")
    A("ds_add_u32 v114, v113")
    A("s_mov_b64 exec, -1")
    stamp(4)
    if wo_gate:
        A(f"v_mov_b32 v114, {L_C4}")
        lds_wait_ge(114, 113, 8, sleep=2)
    A("v_lshlrev_b32 v113, 11, v4")
    A("v_lshl_add_u32 v113, v5, 4, v113")
    A("s_lshl_b32 s54, s27, 7")
    A("s_lshl_b32 s55, s6, 5")
    A("s_add_u32 s54, s54, s55")
    A("s_lshl_b32 s54, s54, 10")
    A("s_lshl_b32 s55, s52, 8")
    A("s_add_u32 s54, s54, s55")
    for e in range(8):
        A(f"s_add_u32 s55, s54, {8 * (e & 3) * 1024}")
        A(f"buffer_load_dwordx4 v[{W + 4 * e}:{W + 4 * e + 3}], v113, s[36:39], s55 offen offset:{(e >> 2) * 1024} {ldflag}")
    stamp(5)
    A("s_mul_i32 s54, s6, 528")
    A(f"s_add_u32 s54, s54, {L_AP}")
    A("v_lshlrev_b32 v113, 4, v3")
    A("v_add_u32 v113, s54, v113")
    A("s_lshl_b32 s54, s6, 5")
    A(f"s_add_u32 s54, s54, {L_ST}")
    A("v_mov_b32 v114, s54")
    A("s_barrier")
    stamp(6)
    CB = 116
    A(f"ds_read_b128 v[{CB}:{CB + 3}], v114")
    A(f"ds_read_b128 v[{CB + 4}:{CB + 7}], v114 offset:16")
    A(f"ds_read_b128 v[{CB + 8}:{CB + 11}], v114 offset:128")
    A(f"ds_read_b128 v[{CB + 12}:{CB + 15}], v114 offset:144")
    for a in range(8):
        A(f"ds_read_b128 v[{HACC + 4 * a}:{HACC + 4 * a + 3}], v113 offset:{a * AP_A}")
    A("s_waitcnt lgkmcnt(10)" if not instr else "s_waitcnt lgkmcnt(0)")
    A(f"v_max3_f32 v115, v{CB}, v{CB + 1}, v{CB + 2}")
    A(f"v_max3_f32 v115, v115, v{CB + 3}, v{CB + 4}")
    A(f"v_max3_f32 v115, v115, v{CB + 5}, v{CB + 6}")
    A(f"v_max_f32 v115, v115, v{CB + 7}")
    for a in range(8):
        A(f"v_sub_f32 v{CB + a}, v{CB + a}, v115")
    for a in range(8):
        A(f"v_exp_f32 v{CB + a}, v{CB + a}")
    A("s_waitcnt lgkmcnt(8)" if not instr else "s_waitcnt lgkmcnt(0)")
    A(f"v_mul_f32 v132, v{CB}, v{CB + 8}")
    for a in range(1, 8):
        A(f"v_fmac_f32 v132, v{CB + a}, v{CB + 8 + a}")
    A("v_rcp_f32 v133, v132")
    A("v_log_f32 v134, v132")
    A("s_waitcnt lgkmcnt(0)")
    for i in range(4):
        A(f"v_mul_f32 v{136 + i}, v{CB}, v{HACC + i}")
    for a in range(1, 8):
        for i in range(4):
            A(f"v_fmac_f32 v{136 + i}, v{CB + a}, v{HACC + 4 * a + i}")
    A("v_add_f32 v134, v134, v115")
    for i in range(4):
        A(f"v_mul_f32 v{136 + i}, v133, v{136 + i}")
    tag4(136)
    A("v_and_b32 v135, s64, v134")
    A("v_sub_f32 v135, v134, v135")
    A(f"v_bfi_b32 v140, s64, v134, v{TG}")
    A(f"v_bfi_b32 v141, s64, v135, v{TG + 1}")
    A(f"v_bfi_b32 v142, s64, v134, v{TG + 2}")
    A(f"v_bfi_b32 v143, s64, v134, v{TG + 3}")
    A("s_mov_b32 exec_hi, 0")
    A("buffer_store_dwordx4 v[136:139], v6, s[48:51], s56 offen sc1")
    A("s_mov_b64 exec, 1")
    A("buffer_store_dwordx4 v[140:143], v6, s[48:51], s57 offen sc1")
    A("s_mov_b64 exec, -1")
    stamp(7)
    A("v_and_b32 v113, 7, v1")
    A("v_lshlrev_b32 v113, 4, v113")
    A("v_bfe_u32 v114, v1, 3, 1")
    A("v_add_u32 v113, v113, v114")
    A("s_lshr_b32 s54, s27, 2")
    A("s_lshl_b32 s54, s54, 1")
    A("s_lshl_b32 s55, s3, 7")
    A("s_add_u32 s54, s54, s55")
    A("v_add_u32 v113, s54, v113")
    A("v_lshlrev_b32 v114, 6, v113")
    A("v_lshlrev_b32 v113, 11, v113")
    A("v_lshl_add_u32 v113, v4, 5, v113")
    A("s_and_b32 s55, s27, 3")
    A("s_lshl_b32 s54, s55, 9")
    A("s_lshl_b32 s53, s6, 7")
    A("s_add_u32 s54, s54, s53")
    A(f"s_add_u32 s54, s54, {OB}")
    A("s_lshl_b32 s55, s55, 4")
    A(f"s_add_u32 s55, s55, {OW}")
    transpose(9)
    stamp(8)

    def oloads():
        A("buffer_load_dwordx4 v[116:119], v113, s[48:51], s54 offen sc1")
        A("buffer_load_dwordx4 v[120:123], v113, s[48:51], s54 offen offset:16 sc1")
        A("buffer_load_dwordx4 v[124:127], v114, s[48:51], s55 offen sc1")
    poll("o", oloads, [116, 120, 124], 128, levels=o_levels)
    stamp(9)
    A("v_and_b32 v124, s64, v124")
    A("v_add_f32 v124, v124, v125")
    A("s_nop 1")
    A("v_mov_b32_dpp v125, v124 row_ror:8 row_mask:0xf bank_mask:0xf")
    A("v_sub_f32 v125, v125, v124")
    A("v_exp_f32 v125, v125")
    A("s_nop 0")
    A("v_add_f32 v125, 1.0, v125")
    A("v_rcp_f32 v125, v125")
    A("s_nop 0")
    for i in range(8):
        A(f"v_mul_f32 v{116 + i}, v125, v{116 + i}")
    for i in range(8):
        A(f"v_add_f32_dpp v{128 + i}, v{116 + i}, v{116 + i} row_ror:8 row_mask:0xf bank_mask:0xf")
    for u in range(4):
        A(f"v_cvt_pk_bf16_f32 v{XF + u}, v{128 + 2 * u}, v{128 + 2 * u + 1}")
    A("s_nop 1")
    do_mfma(XF)
    A("v_lshlrev_b32 v113, 2, v2")
    A("v_lshrrev_b32 v114, 3, v3")
    A("v_add_u32 v113, v113, v114")
    A("v_lshlrev_b32 v113, 12, v113")
    A("v_and_b32 v114, 7, v3")
    A("v_lshl_add_u32 v113, v114, 4, v113")
    A("s_lshl_b32 s54, s3, 19")
    A("s_lshl_b32 s55, s52, 17")
    A("s_add_u32 s54, s54, s55")
    A("s_lshl_b32 s55, s27, 7")
    A("s_add_u32 s54, s54, s55")
    A(f"s_add_u32 s54, s54, {PB}")
    reduce_helpers(lambda: A("s_barrier"))
    tag4(116)
    A("buffer_store_dwordx4 v[116:119], v113, s[48:51], s54 offen sc1")
    stamp(10)
    A("s_cmp_lg_u32 s6, 0")
    A("s_cbranch_scc1 L_hend")
    A("s_lshl_b32 s54, s2, 12")
    A(f"s_add_u32 s54, s54, {PB}")

    def ploads():
        for i in range(4):
            A(f"buffer_load_dwordx4 v[{8 + 4 * i}:{11 + 4 * i}], v6, s[48:51], s54 offen offset:{1024 * i} sc1")
    poll("p", ploads, [8, 12, 16, 20], 24, levels=p_levels)
    stamp(11)
    for i in range(4):
        A(f"v_add_f32 v{8 + i}, v{8 + i}, v{12 + i}")
        A(f"v_add_f32 v{16 + i}, v{16 + i}, v{20 + i}")
    for i in range(4):
        A(f"v_add_f32 v{8 + i}, v{8 + i}, v{16 + i}")
    A("s_nop 1")
    for i in range(4):
        A(f"v_add_f32_dpp v{12 + i}, v{8 + i}, v{8 + i} row_ror:8 row_mask:0xf bank_mask:0xf")
    for i in range(4):
        A(f"v_mov_b32 v{8 + i}, v{12 + i}")
    A("s_nop 1")
    for i in range(4):
        A(f"v_permlane16_swap_b32 v{8 + i}, v{12 + i}")
    A("s_nop 1")
    for i in range(4):
        A(f"v_add_f32 v{12 + i}, v{8 + i}, v{12 + i}")
    for i in range(4):
        A(f"v_mov_b32 v{8 + i}, v{12 + i}")
    A("s_nop 1")
    for i in range(4):
        A(f"v_permlane32_swap_b32 v{8 + i}, v{12 + i}")
    A("s_nop 1")
    for i in range(4):
        A(f"v_add_f32 v{12 + i}, v{8 + i}, v{12 + i}")
    A("v_bfe_u32 v16, v1, 3, 2")
    A("v_cmp_eq_u32 vcc, 1, v16")
    A("s_nop 1")
    A("v_cndmask_b32 v12, v12, v13, vcc")
    A("v_cmp_eq_u32 vcc, 2, v16")
    A("s_nop 1")
    A("v_cndmask_b32 v12, v12, v14, vcc")
    A("v_cmp_eq_u32 vcc, 3, v16")
    A("s_nop 1")
    A("v_cndmask_b32 v12, v12, v15, vcc")
    A("v_cvt_pk_bf16_f32 v12, v12, v12")
    A("s_bfe_u32 s54, s26, 0x30002")
    A("s_lshl_b32 s54, s54, 11")
    A("s_lshl_b32 s55, s3, 10")
    A("s_add_u32 s54, s54, s55")
    A("s_lshr_b32 s55, s26, 5")
    A("s_lshl_b32 s55, s55, 8")
    A("s_add_u32 s54, s54, s55")
    A("s_and_b32 s55, s26, 3")
    A("s_lshl_b32 s55, s55, 6")
    A("s_add_u32 s54, s54, s55")
    A("v_lshlrev_b32 v16, 1, v1")
    A("s_mov_b32 exec_hi, 0")
    A("buffer_store_short v12, v16, s[44:47], s54 offen")
    A("s_cmp_lg_u32 s26, 0")
    A("s_cbranch_scc1 L_noep")
    A("s_mov_b64 exec, 1")
    A("v_mov_b32 v18, s62")
    A("v_mov_b32 v19, s63")
    A("s_lshl_b32 s54, s3, 8")
    A(f"s_add_u32 s54, s54, {EP}")
    A("buffer_store_dwordx2 v[18:19], v16, s[48:51], s54 offen")
    A.label("L_noep")
    A("s_mov_b64 exec, -1")
    stamp(12)
    A.label("L_hend")
    dump_stamps(13)
    A.label("L_end")
    A("s_endpgm")

    out = [HEADER.rstrip("\n")]
    out.append(f"; @launch grid=(256,1,1) block=(768,1,1) lds={LDS_BYTES}")
    out.append('.amdgcn_target "amdgcn-amd-amdhsa--gfx950"')
    out.append(".text")
    out.append(f".globl {NAME}")
    out.append(".p2align 8")
    out.append(f".type {NAME},@function")
    out += A.L
    out.append('.section .rodata,"a"')
    out.append(".p2align 6")
    out.append(f".amdhsa_kernel {NAME}")
    out.append("  .amdhsa_next_free_vgpr 168")
    out.append("  .amdhsa_next_free_sgpr 96")
    out.append("  .amdhsa_accum_offset 168")
    out.append("  .amdhsa_group_segment_fixed_size 0")
    out.append("  .amdhsa_kernarg_size 104")
    out.append("  .amdhsa_user_sgpr_count 2")
    out.append("  .amdhsa_user_sgpr_kernarg_segment_ptr 1")
    out.append("  .amdhsa_system_sgpr_workgroup_id_x 1")
    out.append(".end_amdhsa_kernel")
    return "\n".join(out) + "\n"


if __name__ == "__main__":
    import argparse
    ap = argparse.ArgumentParser()
    ap.add_argument("-o", default="concat_heads__sliding_block_cached__sliding_block_cached__decode.s")
    ap.add_argument("--instr", action="store_true")
    ap.add_argument("--dbgtime", action="store_true")
    ap.add_argument("--ldflag", default="nt")
    ap.add_argument("--no-wo-gate", action="store_true")
    ap.add_argument("--q-sleep0", type=int, default=0)
    ap.add_argument("--q-sleep", type=int, default=4)
    ap.add_argument("--o-levels", default="32:16,9:4")
    ap.add_argument("--p-levels", default="32:16,9:4")
    a = ap.parse_args()
    def lv(x):
        return [tuple(int(v) for v in p.split(":")) for p in x.split(",") if p]
    open(a.o, "w").write(gen(dbgtime=a.dbgtime, instr=a.instr or a.dbgtime, ldflag=a.ldflag, wo_gate=not a.no_wo_gate,
                             q_sleep0=a.q_sleep0, q_sleep=a.q_sleep,
                             o_levels=lv(a.o_levels), p_levels=lv(a.p_levels)))
```

```python
import sys, math, struct

NAME = "concat_heads__sliding_block_cached__sliding_block_cached__decode_kernel"

HEADER = """; Kernarg layout for this problem (104 bytes, ptrs only, base s[0:1]):
"""

def f32bits(x):
    return struct.unpack("<I", struct.pack("<f", x))[0]

C_SCALE = f32bits(math.log2(math.e) / math.sqrt(128.0))

QP = 0x000000
OB = 0x100000
OW = 0x180000
PB = 0x200000
EP = 0x300000
TS = 0x400000
WS_BYTES = 285229056
GOFF = 0x800000
N_LOCAL = 256

L_C1, L_C2, L_C3, L_C5, L_C4 = 0, 4, 8, 12, 16
L_TG = 32
L_F6 = 48
L_QL = 64
L_ST = 1088
L_QR = 1536
QR_W = 4224
L_AP = L_QR + 4 * QR_W
AP_A = 2112
L_OL = L_AP + 8 * AP_A
LDS_BYTES = L_OL + 4 * 528

SPIN_MAX = 1 << 20


class Asm:
    def __init__(self):
        self.L = []
        self.nlab = 0

    def __call__(self, s):
        self.L.append("    " + s)

    def label(self, s):
        self.L.append(s + ":")

    def newlabel(self, pfx="L"):
        self.nlab += 1
        return f"{pfx}_{self.nlab}"


def gen(instr=False, ldflag="nt", q_sleep0=16, q_sleep=16,
        wo_thr=16, o_sleep=8, o_depth=4, p_thr=16, p_sleep=8, p_depth=4, prio=True, exp=0, remap=1, xred=1, gcopy=3):
    A = Asm()

    def stamp(slot):
        if instr:
            A(f"s_memrealtime s[{66 + 2 * slot}:{67 + 2 * slot}]")

    def srd(d, lo, nbytes):
        A(f"s_mov_b32 s{d}, s{lo}")
        A(f"s_and_b32 s{d + 1}, s{lo + 1}, 0xffff")
        A(f"s_mov_b32 s{d + 2}, {nbytes}")
        A(f"s_mov_b32 s{d + 3}, 0x20000")

    def lds_wait_ge(addr_v, tmp_v, val, sleep=1):
        lab = A.newlabel("L_lw")
        done = A.newlabel("L_lwd")
        A(f"s_mov_b32 s60, {SPIN_MAX}")
        A.label(lab)
        A(f"ds_read_b32 v{tmp_v}, v{addr_v}")
        A("s_waitcnt lgkmcnt(0)")
        A(f"v_readfirstlane_b32 s61, v{tmp_v}")
        A(f"s_cmp_ge_u32 s61, {val}")
        A(f"s_cbranch_scc1 {done}")
        if sleep:
            A(f"s_sleep {sleep}")
        A("s_sub_u32 s60, s60, 1")
        A("s_cmp_lg_u32 s60, 0")
        A(f"s_cbranch_scc1 {lab}")
        A.label(done)

    def lds_inc(addr, va, vb):
        A(f"v_mov_b32 v{va}, 1")
        A(f"v_mov_b32 v{vb}, {addr}")
        A("s_mov_b64 exec, 1")
        A(f"ds_add_u32 v{vb}, v{va}")
        A("s_mov_b64 exec, -1")

    def dump_stamps(nslots):
        if not instr:
            return
        A("s_waitcnt lgkmcnt(0)")
        A("s_mul_i32 s60, s2, 12")
        A("s_add_u32 s60, s60, s6")
        A("s_lshl_b32 s60, s60, 7")
        A(f"s_add_u32 s60, s60, {TS}")
        A("s_mov_b64 exec, 1")
        A("v_mov_b32 v1, 0")
        for i in range(nslots):
            A(f"v_mov_b32 v2, s{66 + 2 * i}")
            A(f"v_mov_b32 v3, s{67 + 2 * i}")
            A(f"buffer_store_dwordx2 v[2:3], v1, s[48:51], s60 offen offset:{8 * i}")
            A("s_nop 1")
        A("s_mov_b64 exec, -1")

    def make_tags(TG):
        A("s_add_u32 s62, s62, 1")
        A("s_addc_u32 s63, s63, 0")
        A("s_and_b32 s54, s62, 0x3ff")
        A(f"v_mov_b32 v{TG}, s54")
        A("s_bfe_u32 s54, s62, 0xa000a")
        A(f"v_mov_b32 v{TG + 1}, s54")
        A("s_bfe_u32 s54, s62, 0xa0014")
        A(f"v_mov_b32 v{TG + 2}, s54")
        A("s_lshr_b64 s[54:55], s[62:63], 30")
        A("s_and_b32 s54, s54, 0x3ff")
        A(f"v_mov_b32 v{TG + 3}, s54")

    def tag4(r, TG):
        for i in range(4):
            A(f"v_bfi_b32 v{r + i}, s64, v{r + i}, v{TG + i}")

    A.label(NAME)
    stamp(0)
    A("s_cmp_ge_u32 s2, 256")
    A("s_cbranch_scc1 L_end")
    if remap:
        A("s_and_b32 s3, s2, 7")
        A("s_lshl_b32 s3, s3, 1")
        A("s_lshr_b32 s4, s2, 7")
        A("s_add_u32 s3, s3, s4")
        A("s_bfe_u32 s4, s2, 0x40003")
        A("s_lshl_b32 s92, s3, 4")
        A("s_add_u32 s92, s92, s4")
        A("s_and_b32 s5, s3, 7")
        A("s_lshr_b32 s93, s4, 1")
        A("s_lshl_b32 s93, s93, 3")
        A("s_add_u32 s93, s93, s5")
        A("s_lshl_b32 s93, s93, 1")
        A("s_and_b32 s4, s4, 1")
        A("s_add_u32 s93, s93, s4")
        A("s_lshr_b32 s3, s3, 3")
        A("s_lshl_b32 s4, s3, 7")
        A("s_add_u32 s93, s93, s4")
    else:
        A("s_lshr_b32 s3, s2, 7")
        A("s_mov_b32 s92, s2")
        A("s_mov_b32 s93, s2")
    A("s_mul_i32 s4, s3, 40")
    A("s_add_u32 s4, s0, s4")
    A("s_addc_u32 s5, s1, 0")
    A("s_load_dwordx8 s[8:15], s[4:5], 0")
    A("s_load_dwordx2 s[16:17], s[4:5], 32")
    A("s_load_dwordx2 s[20:21], s[0:1], 80")
    A("s_load_dwordx2 s[24:25], s[0:1], 96")
    A("v_lshrrev_b32 v1, 6, v0")
    A("v_mov_b32 v2, 0")
    A("v_readfirstlane_b32 s6, v1")
    A("v_and_b32 v1, 63, v0")
    A("s_and_b32 s26, s92, 127")
    A("s_and_b32 s94, s93, 127")
    A("v_lshrrev_b32 v4, 4, v1")
    A(f"s_mov_b32 s65, {EP}")
    A("s_mov_b32 s64, 0xfffffc00")
    A("s_cmp_lt_u32 s6, 4")
    A("s_cbranch_scc1 L_helper")

    KR, VR, QF, SR = 8, 72, 136, 152
    ACC, VT, PP = 8, 40, 136
    A("s_sub_u32 s7, s6, 4")
    A("s_lshr_b32 s36, s94, 1")
    A("s_lshl_b32 s36, s36, 20")
    A("s_and_b32 s37, s94, 1")
    A("s_lshl_b32 s37, s37, 17")
    A("s_add_u32 s36, s36, s37")
    A("s_lshl_b32 s37, s7, 14")
    A("s_add_u32 s36, s36, s37")
    A("s_add_u32 s36, s36, 786432")
    A("s_add_u32 s37, s36, 4096")
    A("s_add_u32 s38, s36, 8192")
    A("s_add_u32 s39, s36, 12288")
    A("v_and_b32 v2, 3, v1")
    A("v_lshlrev_b32 v2, 10, v2")
    A("v_bfe_u32 v3, v1, 2, 2")
    A("v_lshl_add_u32 v2, v3, 8, v2")
    A("v_lshl_add_u32 v2, v4, 4, v2")
    A("v_lshlrev_b32 v3, 4, v1")
    A("s_waitcnt lgkmcnt(0)")
    srd(28, 10, 67108864)
    srd(32, 12, 67108864)
    A("s_barrier")
    for T in range(4):
        for kk in range(4):
            r = KR + (T * 4 + kk) * 4
            A(f"buffer_load_dwordx4 v[{r}:{r + 3}], v2, s[28:31], s{36 + T} offen offset:{kk * 64} {ldflag}")
    for i in range(16):
        r = VR + i * 4
        A(f"buffer_load_dwordx4 v[{r}:{r + 3}], v3, s[32:35], s{36 + i // 4} offen offset:{(i % 4) * 1024} {ldflag}")
    stamp(1)
    lds_inc(L_C4, 5, 6)
    srd(48, 24, WS_BYTES)
    A("v_and_b32 v7, 3, v1")
    A("v_lshlrev_b32 v7, 8, v7")
    A("v_lshl_add_u32 v7, v4, 4, v7")
    A(f"v_mov_b32 v6, {L_C3}")
    lds_wait_ge(6, 5, 4, sleep=2)
    stamp(2)
    if prio:
        A("s_setprio 1")
    for kk in range(4):
        A(f"ds_read_b128 v[{QF + 4 * kk}:{QF + 4 * kk + 3}], v7 offset:{L_QL + kk * 64}")
    A(f"s_mov_b32 s40, {C_SCALE}")
    A("s_mov_b32 s41, 0x05040100")
    A("s_mov_b32 s42, 0x07060302")
    A("s_waitcnt lgkmcnt(0)")
    for T in range(4):
        A(f"s_waitcnt vmcnt({28 - 4 * T})")
        for kk in range(4):
            r = KR + (T * 4 + kk) * 4
            c = "0" if kk == 0 else f"v[{SR + 4 * T}:{SR + 4 * T + 3}]"
            A(f"v_mfma_f32_16x16x32_bf16 v[{SR + 4 * T}:{SR + 4 * T + 3}], v[{r}:{r + 3}], v[{QF + 4 * kk}:{QF + 4 * kk + 3}], {c}")
    stamp(3)
    A("v_and_b32 v5, 3, v1")
    A("v_mul_u32_u24 v5, 528, v5")
    A("v_lshl_add_u32 v5, v4, 7, v5")
    A(f"s_mul_i32 s43, s7, {AP_A}")
    A(f"s_add_u32 s43, s43, {L_AP}")
    A("v_add_u32 v5, s43, v5")
    A("s_nop 3")
    A(f"v_max3_f32 v2, v{SR}, v{SR + 1}, v{SR + 2}")
    for i in range(3, 15, 2):
        A(f"v_max3_f32 v2, v2, v{SR + i}, v{SR + i + 1}")
    A(f"v_max_f32 v2, v2, v{SR + 15}")
    A("v_mov_b32 v3, v2")
    A("s_nop 1")
    A("v_permlane32_swap_b32 v2, v3")
    A("s_nop 1")
    A("v_max_f32 v2, v2, v3")
    A("v_mov_b32 v3, v2")
    A("s_nop 1")
    A("v_permlane16_swap_b32 v2, v3")
    A("s_nop 1")
    A("v_max_f32 v2, v2, v3")
    A("v_mul_f32 v2, s40, v2")
    for i in range(16):
        A(f"v_fma_f32 v{SR + i}, v{SR + i}, s40, -v2")
    for i in range(16):
        A(f"v_exp_f32 v{SR + i}, v{SR + i}")
    A("s_nop 0")
    for u in range(8):
        A(f"v_cvt_pk_bf16_f32 v{PP + u}, v{SR + 2 * u}, v{SR + 2 * u + 1}")
    A(f"v_add_f32 v3, v{SR}, v{SR + 1}")
    A(f"v_add_f32 v6, v{SR + 2}, v{SR + 3}")
    for i in range(4, 16, 2):
        A(f"v_add_f32 v3, v3, v{SR + i}")
        A(f"v_add_f32 v6, v6, v{SR + i + 1}")
    A("v_add_f32 v3, v3, v6")
    A("v_mov_b32 v6, v3")
    A("s_nop 1")
    A("v_permlane32_swap_b32 v3, v6")
    A("s_nop 1")
    A("v_add_f32 v3, v3, v6")
    A("v_mov_b32 v6, v3")
    A("s_nop 1")
    A("v_permlane16_swap_b32 v3, v6")
    A("s_nop 1")
    A("v_add_f32 v3, v3, v6")
    A("v_lshlrev_b32 v6, 5, v1")
    A("s_lshl_b32 s43, s7, 2")
    A(f"s_add_u32 s43, s43, {L_ST}")
    A("v_add_u32 v6, s43, v6")
    A("s_mov_b64 exec, 15")
    A("ds_write_b32 v6, v2")
    A("ds_write_b32 v6, v3 offset:128")
    A("s_mov_b64 exec, -1")
    ATG = 144
    A(f"v_mov_b32 v7, {L_TG}")
    A(f"ds_read_b128 v[{ATG}:{ATG + 3}], v7")
    A("s_and_b32 s43, s7, 3")
    A("s_lshl_b32 s56, s93, 11")
    A("s_lshl_b32 s55, s43, 9")
    A("s_add_u32 s56, s56, s55")
    A(f"s_add_u32 s56, s56, {OB}")
    A("s_lshl_b32 s57, s93, 6")
    A("s_lshl_b32 s55, s43, 4")
    A("s_add_u32 s57, s57, s55")
    A(f"s_add_u32 s57, s57, {OW}")
    A("v_and_b32 v2, 31, v1")
    A("v_lshlrev_b32 v2, 4, v2")
    A("s_mul_i32 s54, s43, 528")
    A(f"s_add_u32 s54, s54, {L_AP}")
    A("v_add_u32 v3, s54, v2")
    A("s_lshl_b32 s54, s43, 5")
    A(f"s_add_u32 s54, s54, {L_ST}")
    A("v_mov_b32 v6, s54")
    A(f"v_mov_b32 v7, {L_C5}")
    A("v_mov_b32 v148, 1")
    for G in range(2):
        for u in range(4):
            A(f"s_waitcnt vmcnt({15 - (8 * G + 2 * u + 1)})")
            r0 = VR + (8 * G + 2 * u) * 4
            r1 = r0 + 4
            for t in range(8):
                sel = "s41" if (t & 1) == 0 else "s42"
                A(f"v_perm_b32 v{VT + 4 * t + u}, v{r1 + (t >> 1)}, v{r0 + (t >> 1)}, {sel}")
        A("s_nop 1")
        for t in range(8):
            c = "0" if G == 0 else f"v[{ACC + 4 * t}:{ACC + 4 * t + 3}]"
            A(f"v_mfma_f32_16x16x32_bf16 v[{ACC + 4 * t}:{ACC + 4 * t + 3}], v[{VT + 4 * t}:{VT + 4 * t + 3}], v[{PP + 4 * G}:{PP + 4 * G + 3}], {c}")
    stamp(4)
    A("s_mov_b32 exec_lo, 0x000f000f")
    A("s_mov_b32 exec_hi, 0x000f000f")
    A("s_nop 0")
    for t in range(8):
        if t == 7:
            A("s_nop 0")
        A(f"ds_write_b128 v5, v[{ACC + 4 * t}:{ACC + 4 * t + 3}] offset:{16 * t}")
    A("s_mov_b64 exec, 1")
    A("s_waitcnt lgkmcnt(0)")
    A("ds_add_u32 v7, v148")
    A("s_mov_b64 exec, -1")
    A("s_cmp_lt_u32 s7, 4")
    A("s_cbranch_scc1 L_aend")
    if prio:
        A("s_setprio 0")
    lds_wait_ge(7, 149, 8, sleep=0)
    if prio:
        A("s_setprio 1")
    stamp(5)
    CB, OA = 72, 8
    A(f"ds_read_b128 v[{CB}:{CB + 3}], v6")
    A(f"ds_read_b128 v[{CB + 4}:{CB + 7}], v6 offset:16")
    A(f"ds_read_b128 v[{CB + 8}:{CB + 11}], v6 offset:128")
    A(f"ds_read_b128 v[{CB + 12}:{CB + 15}], v6 offset:144")
    for a in range(8):
        A(f"ds_read_b128 v[{OA + 4 * a}:{OA + 4 * a + 3}], v3 offset:{a * AP_A}")
    A("s_waitcnt lgkmcnt(10)" if not instr else "s_waitcnt lgkmcnt(0)")
    A(f"v_max3_f32 v90, v{CB}, v{CB + 1}, v{CB + 2}")
    A(f"v_max3_f32 v90, v90, v{CB + 3}, v{CB + 4}")
    A(f"v_max3_f32 v90, v90, v{CB + 5}, v{CB + 6}")
    A(f"v_max_f32 v90, v90, v{CB + 7}")
    for a in range(8):
        A(f"v_sub_f32 v{CB + a}, v{CB + a}, v90")
    for a in range(8):
        A(f"v_exp_f32 v{CB + a}, v{CB + a}")
    A("s_waitcnt lgkmcnt(8)" if not instr else "s_waitcnt lgkmcnt(0)")
    A(f"v_mul_f32 v91, v{CB}, v{CB + 8}")
    for a in range(1, 8):
        A(f"v_fmac_f32 v91, v{CB + a}, v{CB + 8 + a}")
    A("v_rcp_f32 v92, v91")
    A("v_log_f32 v93, v91")
    A("s_waitcnt lgkmcnt(0)")
    for i in range(4):
        A(f"v_mul_f32 v{96 + i}, v{CB}, v{OA + i}")
    for a in range(1, 8):
        for i in range(4):
            A(f"v_fmac_f32 v{96 + i}, v{CB + a}, v{OA + 4 * a + i}")
    A("v_add_f32 v93, v93, v90")
    for i in range(4):
        A(f"v_mul_f32 v{96 + i}, v92, v{96 + i}")
    tag4(96, ATG)
    A("s_mov_b32 exec_hi, 0")
    A("buffer_store_dwordx4 v[96:99], v2, s[48:51], s56 offen")
    A("v_and_b32 v94, s64, v93")
    A("v_sub_f32 v94, v93, v94")
    A(f"v_bfi_b32 v100, s64, v93, v{ATG}")
    A(f"v_bfi_b32 v101, s64, v94, v{ATG + 1}")
    A(f"v_bfi_b32 v102, s64, v93, v{ATG + 2}")
    A(f"v_bfi_b32 v103, s64, v93, v{ATG + 3}")
    A("s_mov_b64 exec, 1")
    A("buffer_store_dwordx4 v[100:103], v2, s[48:51], s57 offen")
    A("s_mul_i32 s54, s43, 528")
    A(f"s_add_u32 s54, s54, {L_OL}")
    A("s_lshl_b32 s55, s43, 2")
    A(f"s_add_u32 s55, s55, {L_F6}")
    A("v_mov_b32 v104, s55")
    A("s_mov_b32 exec_lo, -1")
    A("v_add_u32 v105, s54, v2")
    A("ds_write_b128 v105, v[96:99]")
    A("s_mov_b64 exec, 1")
    A("ds_write_b128 v105, v[100:103] offset:512")
    A("s_waitcnt lgkmcnt(0)")
    A("ds_write_b32 v104, v148")
    A("s_mov_b64 exec, -1")
    stamp(6)
    A.label("L_aend")
    dump_stamps(7)
    A("s_endpgm")

    A.label("L_helper")
    W, XF, HT, HACC = 8, 40, 44, 76
    TG = 108
    PO = 144
    A("v_mov_b32 v8, 0")
    A("v_mov_b32 v9, 0")
    A("v_mov_b32 v10, 0")
    A("v_mov_b32 v11, 0")
    A("s_cmp_lg_u32 s6, 0")
    A("s_cbranch_scc1 L_noinit")
    A("ds_write_b128 v2, v[8:11]")
    A("ds_write_b128 v2, v[8:11] offset:16")
    A("ds_write_b128 v2, v[8:11] offset:48")
    A.label("L_noinit")
    A("s_lshr_b32 s27, s26, 2")
    A("s_and_b32 s52, s26, 3")
    A("v_and_b32 v5, 15, v1")
    A("v_and_b32 v2, 7, v1")
    A("v_lshlrev_b32 v2, 10, v2")
    A("v_lshl_add_u32 v2, v4, 4, v2")
    A("s_lshl_b32 s53, s52, 7")
    A("s_lshl_b32 s54, s6, 5")
    A("s_add_u32 s53, s53, s54")
    A("s_lshl_b32 s54, s53, 1")
    A("v_lshlrev_b32 v3, 16, v4")
    A("v_lshl_add_u32 v3, v5, 4, v3")
    A("s_lshl_b32 s56, s53, 13")
    A("s_lshl_b32 s55, s27, 8")
    A("s_add_u32 s56, s56, s55")
    A("s_waitcnt lgkmcnt(0)")
    srd(28, 8, 8192)
    srd(32, 14, 4194304)
    A(f"buffer_load_dwordx4 v[{XF}:{XF + 3}], v2, s[28:31], s54 offen")
    for e in range(8):
        A(f"buffer_load_dwordx4 v[{W + 4 * e}:{W + 4 * e + 3}], v3, s[32:35], s56 offen {ldflag}")
        if e < 7:
            A("s_add_u32 s56, s56, 8192")
    A("s_barrier")
    srd(36, 16, 4194304)
    srd(44, 20, 16384)
    srd(48, 24, WS_BYTES)
    A("v_lshlrev_b32 v6, 4, v1")
    A("s_mov_b32 s58, 0x05040100")
    A("s_mov_b32 s59, 0x07060302")
    A("s_mov_b32 s28, 0")
    A("s_mov_b32 s29, 0")
    A("s_cmp_lg_u32 s6, 0")
    A("s_cbranch_scc1 L_noepoch")
    A("s_load_dwordx2 s[62:63], s[24:25], s65")
    A("s_load_dwordx2 s[22:23], s[0:1], 88")
    A("s_waitcnt lgkmcnt(0)")
    make_tags(TG)
    srd(40, 22, 256)
    A(f"v_mov_b32 v113, {L_TG}")
    A("s_mov_b64 exec, 1")
    A(f"ds_write_b128 v113, v[{TG}:{TG + 3}]")
    A("s_mov_b64 exec, -1")
    A.label("L_noepoch")

    def transpose(first_wait):
        for u in range(4):
            if first_wait is not None:
                A(f"s_waitcnt vmcnt({first_wait - (2 * u + 1)})")
            r0 = W + 8 * u
            r1 = r0 + 4
            for t in range(8):
                sel = "s58" if (t & 1) == 0 else "s59"
                A(f"v_perm_b32 v{HT + 4 * t + u}, v{r1 + (t >> 1)}, v{r0 + (t >> 1)}, {sel}")

    def do_mfma(bop):
        for t in range(8):
            A(f"v_mfma_f32_16x16x32_bf16 v[{HACC + 4 * t}:{HACC + 4 * t + 3}], v[{HT + 4 * t}:{HT + 4 * t + 3}], v[{bop}:{bop + 3}], 0")

    def check(regs4, tmp):
        n = 0
        for r in regs4:
            for i in range(4):
                A(f"v_xor_b32 v{tmp + n}, v{r + i}, v{TG + i}")
                n += 1
        live = list(range(tmp, tmp + n))
        while len(live) > 1:
            nxt = []
            while len(live) >= 3:
                a, b, c = live[:3]
                live = live[3:]
                A(f"v_or3_b32 v{a}, v{a}, v{b}, v{c}")
                nxt.append(a)
            if len(live) == 2 and not nxt:
                A(f"v_or_b32 v{live[0]}, v{live[0]}, v{live[1]}")
                nxt.append(live[0])
                live = []
            live = nxt + live
        A(f"v_and_b32 v{live[0]}, 0x3ff, v{live[0]}")
        A(f"v_cmp_ne_u32 vcc, 0, v{live[0]}")

    def pub_q_global(name):
        A("s_cmp_lg_u32 s28, 0")
        A(f"s_cbranch_scc1 L_pq_{name}")
        A("s_mov_b64 s[30:31], exec")
        A("s_mov_b64 exec, -1")
        A(f"s_add_u32 s95, s95, {GOFF}")
        A("buffer_store_dwordx4 v[116:119], v136, s[48:51], s95 offen sc1")
        A("s_mov_b32 s28, 1")
        A("s_mov_b64 exec, s[30:31]")
        A.label(f"L_pq_{name}")

    def pub_o_global(name, wait):
        A("s_cmp_lg_u32 s29, 0")
        A(f"s_cbranch_scc1 L_po_{name}")
        A("s_mov_b64 s[30:31], exec")
        A("s_mov_b64 exec, -1")
        A("s_lshl_b32 s32, s6, 2")
        A(f"s_add_u32 s32, s32, {L_F6}")
        A("v_mov_b32 v137, s32")
        if wait:
            A("s_mov_b32 s33, s60")
            lds_wait_ge(137, 138, 1, sleep=1)
            A("s_mov_b32 s60, s33")
        else:
            A("ds_read_b32 v138, v137")
            A("s_waitcnt lgkmcnt(0)")
            A("v_readfirstlane_b32 s32, v138")
            A("s_cmp_eq_u32 s32, 0")
            A(f"s_cbranch_scc1 L_por_{name}")
        A("s_mul_i32 s32, s6, 528")
        A(f"s_add_u32 s32, s32, {L_OL}")
        A("v_lshlrev_b32 v137, 4, v3")
        A("v_add_u32 v138, s32, v137")
        A("v_mov_b32 v139, s32")
        A("ds_read_b128 v[140:143], v138")
        A("ds_read_b128 v[164:167], v139 offset:512")
        A("s_lshl_b32 s32, s93, 11")
        A("s_lshl_b32 s33, s6, 9")
        A("s_add_u32 s32, s32, s33")
        A(f"s_add_u32 s32, s32, {OB + GOFF}")
        A("s_lshl_b32 s34, s93, 6")
        A("s_lshl_b32 s33, s6, 4")
        A("s_add_u32 s34, s34, s33")
        A(f"s_add_u32 s34, s34, {OW + GOFF}")
        A("s_waitcnt lgkmcnt(0)")
        A("s_mov_b32 exec_hi, 0")
        A("buffer_store_dwordx4 v[140:143], v137, s[48:51], s32 offen sc1")
        A("s_mov_b64 exec, 1")
        A("buffer_store_dwordx4 v[164:167], v137, s[48:51], s34 offen sc1")
        A("s_mov_b32 s29, 1")
        A.label(f"L_por_{name}")
        A("s_mov_b64 exec, s[30:31]")
        A.label(f"L_po_{name}")

    def toggle(name, alt):
        if not alt:
            return
        A(f"s_cmp_gt_u32 s60, {SPIN_MAX - N_LOCAL}")
        A(f"s_cbranch_scc1 L_tg_{name}")
        for r in alt:
            A(f"s_xor_b32 s{r}, s{r}, {GOFF}")
        if name[0] == "q":
            pub_q_global(name)
        else:
            pub_o_global(name, False)
        A.label(f"L_tg_{name}")

    def poll2(name, loads, nl, regs4, tmp, thr, sleep, depth, mid=None, nmid=0, mid2=None, alt=()):
        A(f"s_mov_b32 s60, {SPIN_MAX}")
        A.label(f"L_pa_{name}")
        loads()
        A("s_waitcnt vmcnt(0)")
        check(regs4, tmp)
        A("s_mov_b64 s[18:19], vcc")
        A(f"s_cbranch_vccz L_pam_{name}")
        A("s_bcnt1_i32_b64 s61, vcc")
        A(f"s_cmp_le_u32 s61, {thr}")
        A(f"s_cbranch_scc1 L_pam_{name}")
        A("s_mov_b64 exec, vcc")
        if sleep:
            A(f"s_sleep {sleep}")
        toggle(name + "a", alt)
        A("s_sub_u32 s60, s60, 1")
        A("s_cmp_lg_u32 s60, 0")
        A(f"s_cbranch_scc1 L_pa_{name}")
        A.label(f"L_pam_{name}")
        A("s_mov_b64 exec, -1")
        if mid:
            mid()
        if thr == 0 and not mid:
            return
        A("s_cmp_eq_u64 s[18:19], 0")
        A(f"s_cbranch_scc1 L_pnm_{name}")
        A("s_mov_b64 exec, s[18:19]")
        for d in range(depth):
            loads()
        if mid2:
            A("s_mov_b64 exec, -1")
            mid2(nl * depth)
            A("s_mov_b64 exec, s[18:19]")
        A.label(f"L_pb_{name}")
        A(f"s_waitcnt vmcnt({nl * (depth - 1)})")
        if alt and depth > 1:
            A(f"s_cmp_gt_u32 s60, {SPIN_MAX - N_LOCAL}")
            A(f"s_cbranch_scc1 L_pbn_{name}")
            A("s_waitcnt vmcnt(0)")
            A.label(f"L_pbn_{name}")
        check(regs4, tmp)
        A(f"s_cbranch_vccz L_pok_{name}")
        A("s_mov_b64 exec, vcc")
        toggle(name + "b", alt)
        loads()
        A("s_sub_u32 s60, s60, 1")
        A("s_cmp_lg_u32 s60, 0")
        A(f"s_cbranch_scc1 L_pb_{name}")
        A(f"s_branch L_pok_{name}")
        A.label(f"L_pnm_{name}")
        if mid2:
            mid2(0)
        A.label(f"L_pok_{name}")
        A("s_mov_b64 exec, -1")

    transpose(7)
    stamp(1)
    A("v_mul_u32_u24 v7, 528, v5")
    A("v_lshl_add_u32 v7, v4, 7, v7")
    A(f"s_mul_i32 s54, s6, {QR_W}")
    A(f"s_add_u32 s54, s54, {L_QR}")
    A("v_add_u32 v7, s54, v7")
    do_mfma(XF)
    A("v_lshrrev_b32 v2, 5, v1")
    A("s_lshl_b32 s54, s6, 1")
    A("v_add_u32 v2, s54, v2")
    A("v_and_b32 v3, 31, v1")
    A("v_mul_u32_u24 v112, 528, v2")
    A("v_lshl_add_u32 v112, v3, 4, v112")
    A(f"v_add_u32 v112, {L_QR}, v112")

    def reduce_helpers(cnt, tags=False):
        A(f"v_mov_b32 v132, {cnt}")
        A("v_mov_b32 v133, 1")
        A("s_mov_b32 exec_lo, 0x00ff00ff")
        A("s_mov_b32 exec_hi, 0x00ff00ff")
        for t in range(8):
            A(f"ds_write_b128 v7, v[{HACC + 4 * t}:{HACC + 4 * t + 3}] offset:{16 * t}")
        A("s_mov_b64 exec, 1")
        A("s_waitcnt lgkmcnt(0)")
        A("ds_add_u32 v132, v133")
        A("s_mov_b64 exec, -1")
        lds_wait_ge(132, 133, 4, sleep=0)
        if tags:
            A(f"v_mov_b32 v132, {L_TG}")
            A(f"ds_read_b128 v[{TG}:{TG + 3}], v132")
        for w in range(4):
            A(f"ds_read_b128 v[{116 + 4 * w}:{119 + 4 * w}], v112 offset:{w * QR_W}")
        A("s_waitcnt lgkmcnt(0)")
        for i in range(4):
            A(f"v_add_f32 v{116 + i}, v{116 + i}, v{120 + i}")
            A(f"v_add_f32 v{124 + i}, v{124 + i}, v{128 + i}")
        for i in range(4):
            A(f"v_add_f32 v{116 + i}, v{116 + i}, v{124 + i}")

    reduce_helpers(L_C1, tags=True)
    tag4(116, TG)
    A("v_lshlrev_b32 v136, 16, v2")
    A("v_lshl_add_u32 v136, v3, 4, v136")
    A("s_lshl_b32 s95, s3, 19")
    A("s_lshl_b32 s55, s27, 11")
    A("s_add_u32 s95, s95, s55")
    A("s_lshl_b32 s55, s52, 9")
    A("s_add_u32 s95, s95, s55")
    if QP:
        A(f"s_add_u32 s95, s95, {QP}")
    if not (exp & 2):
        A("buffer_store_dwordx4 v[116:119], v136, s[48:51], s95 offen")
    stamp(2)
    A("s_lshr_b32 s54, s94, 1")
    A("s_lshl_b32 s54, s54, 13")
    A("s_lshl_b32 s55, s3, 19")
    A("s_add_u32 s54, s54, s55")
    A("s_lshl_b32 s55, s6, 11")
    A("s_add_u32 s54, s54, s55")
    if QP:
        A(f"s_add_u32 s54, s54, {QP}")
    A("v_lshrrev_b32 v113, 5, v1")
    A("v_lshlrev_b32 v113, 10, v113")
    A("v_lshl_add_u32 v113, v3, 4, v113")
    A("v_lshrrev_b32 v114, 3, v3")
    A("v_lshlrev_b32 v114, 6, v114")
    A("v_and_b32 v115, 7, v3")
    A("v_lshl_add_u32 v114, v115, 1, v114")
    A("s_lshl_b32 s55, s6, 8")
    A(f"s_add_u32 s55, s55, {L_QL}")
    A("v_add_u32 v114, s55, v114")
    if q_sleep0:
        A(f"s_sleep {q_sleep0}")

    def qloads():
        A("buffer_load_dwordx4 v[120:123], v113, s[48:51], s54 offen sc1")
        A("buffer_load_dwordx4 v[124:127], v113, s[48:51], s54 offen offset:512 sc1")
    if not (exp & 1):
        poll2("q", qloads, 2, [120, 124], 128, 0, q_sleep, 1, alt=(54,))
    stamp(3)
    for i in range(4):
        A(f"v_add_f32 v{120 + i}, v{120 + i}, v{124 + i}")
    for i in range(4):
        A(f"v_mov_b32 v{124 + i}, v{120 + i}")
    A("s_nop 1")
    for i in range(4):
        A(f"v_permlane32_swap_b32 v{120 + i}, v{124 + i}")
    A("s_nop 1")
    for i in range(4):
        A(f"v_add_f32 v{120 + i}, v{120 + i}, v{124 + i}")
    A("v_cvt_pk_bf16_f32 v120, v120, v121")
    A("v_cvt_pk_bf16_f32 v122, v122, v123")
    A("s_mov_b32 exec_hi, 0")
    A("ds_write_b16 v114, v120")
    A("ds_write_b16_d16_hi v114, v120 offset:16")
    A("ds_write_b16 v114, v122 offset:32")
    A("ds_write_b16_d16_hi v114, v122 offset:48")
    A("s_waitcnt lgkmcnt(0)")
    A("s_mov_b64 exec, -1")
    lds_inc(L_C3, 113, 114)
    stamp(4)
    A("s_cmp_lg_u32 s6, 0")
    A("s_cbranch_scc1 L_noarr")
    A("v_mov_b32 v115, 0")
    A("s_mov_b64 exec, 1")
    A("buffer_atomic_add v113, v115, s[40:43], 0 offen")
    A("s_mov_b64 exec, -1")
    A.label("L_noarr")
    A("v_lshlrev_b32 v115, 11, v4")
    A("v_lshl_add_u32 v115, v5, 4, v115")
    A("s_lshl_b32 s56, s27, 7")
    A("s_lshl_b32 s55, s6, 5")
    A("s_add_u32 s56, s56, s55")
    A("s_lshl_b32 s56, s56, 10")
    A("s_lshl_b32 s55, s52, 8")
    A("s_add_u32 s56, s56, s55")
    A("v_and_b32 v113, 7, v1")
    A("v_lshlrev_b32 v113, 4, v113")
    A("v_bfe_u32 v114, v1, 3, 1")
    A("v_add_u32 v113, v113, v114")
    A("s_lshr_b32 s54, s27, 2")
    A("s_lshl_b32 s54, s54, 1")
    A("s_lshl_b32 s55, s3, 7")
    A("s_add_u32 s54, s54, s55")
    A("v_add_u32 v113, s54, v113")
    A("v_lshlrev_b32 v114, 6, v113")
    A("v_lshlrev_b32 v113, 11, v113")
    A("v_lshl_add_u32 v113, v4, 5, v113")
    A("s_and_b32 s55, s27, 3")
    A("s_lshl_b32 s54, s55, 9")
    A("s_lshl_b32 s53, s6, 7")
    A("s_add_u32 s54, s54, s53")
    A(f"s_add_u32 s54, s54, {OB}")
    A("s_lshl_b32 s55, s55, 4")
    A(f"s_add_u32 s55, s55, {OW}")
    A("v_lshlrev_b32 v134, 2, v2")
    A("v_lshrrev_b32 v135, 3, v3")
    A("v_add_u32 v134, v134, v135")
    A("v_lshlrev_b32 v134, 12, v134")
    A("v_and_b32 v135, 7, v3")
    A("v_lshl_add_u32 v134, v135, 4, v134")
    A("s_lshl_b32 s53, s3, 19")
    A("s_lshl_b32 s57, s52, 17")
    A("s_add_u32 s53, s53, s57")
    A("s_lshl_b32 s57, s27, 7")
    A("s_add_u32 s53, s53, s57")
    A(f"s_add_u32 s53, s53, {PB}")
    A(f"v_mov_b32 v132, {L_C4}")
    lds_wait_ge(132, 133, 8, sleep=2)
    stamp(5)
    if gcopy & 1:
        pub_q_global("c4")

    def oloads():
        A(f"buffer_load_dwordx4 v[{PO}:{PO + 3}], v113, s[48:51], s54 offen sc1")
        A(f"buffer_load_dwordx4 v[{PO + 4}:{PO + 7}], v113, s[48:51], s54 offen offset:16 sc1")
        A(f"buffer_load_dwordx4 v[{PO + 8}:{PO + 11}], v114, s[48:51], s55 offen sc1")

    def wo_issue():
        stamp(6)
        for e in range(8):
            A(f"s_add_u32 s57, s56, {8 * (e & 3) * 1024}")
            A(f"buffer_load_dwordx4 v[{W + 4 * e}:{W + 4 * e + 3}], v115, s[36:39], s57 offen offset:{(e >> 2) * 1024} {ldflag}")

    def wo_consume(n_after):
        transpose(7 + n_after)
        stamp(8)

    if not (exp & 8):
        wo_issue()
        wo_consume(0)
    if exp & 4:
        for i in (9, 10, 11, 12):
            stamp(i)
        A("s_branch L_hend")
    poll2("o", oloads, 3, [PO, PO + 4, PO + 8], 116, wo_thr, o_sleep, o_depth, alt=(54, 55))
    stamp(9)
    A(f"v_and_b32 v128, s64, v{PO + 8}")
    A(f"v_add_f32 v128, v128, v{PO + 9}")
    A("s_nop 1")
    A("v_mov_b32_dpp v129, v128 row_ror:8 row_mask:0xf bank_mask:0xf")
    A("v_sub_f32 v129, v129, v128")
    A("v_exp_f32 v129, v129")
    A("s_nop 0")
    A("v_add_f32 v129, 1.0, v129")
    A("v_rcp_f32 v129, v129")
    A("s_nop 0")
    for i in range(8):
        A(f"v_mul_f32 v{116 + i}, v129, v{PO + i}")
    for i in range(8):
        A(f"v_add_f32_dpp v{156 + i}, v{116 + i}, v{116 + i} row_ror:8 row_mask:0xf bank_mask:0xf")
    for u in range(4):
        A(f"v_cvt_pk_bf16_f32 v{XF + u}, v{156 + 2 * u}, v{156 + 2 * u + 1}")
    A("s_nop 1")
    do_mfma(XF)
    A("s_nop 3")
    reduce_helpers(L_C2)
    tag4(116, TG)
    A("buffer_store_dwordx4 v[116:119], v134, s[48:51], s53 offen sc1")
    stamp(10)
    if gcopy & 2:
        pub_o_global("end", True)
    A("s_cmp_lg_u32 s6, 0")
    A("s_cbranch_scc1 L_hend")
    if xred:
        A("s_xor_b32 s92, s92, 128")
        A("s_xor_b32 s3, s3, 1")
    A("s_lshl_b32 s54, s92, 12")
    A(f"s_add_u32 s54, s54, {PB}")
    A("s_bfe_u32 s56, s26, 0x30002")
    A("s_lshl_b32 s56, s56, 11")
    A("s_lshl_b32 s55, s3, 10")
    A("s_add_u32 s56, s56, s55")
    A("s_lshr_b32 s55, s26, 5")
    A("s_lshl_b32 s55, s55, 8")
    A("s_add_u32 s56, s56, s55")
    A("s_and_b32 s55, s26, 3")
    A("s_lshl_b32 s55, s55, 6")
    A("s_add_u32 s56, s56, s55")
    A("v_lshlrev_b32 v60, 1, v1")
    A("v_bfe_u32 v61, v1, 3, 2")
    A("v_cmp_eq_u32 s[32:33], 1, v61")
    A("v_cmp_eq_u32 s[34:35], 2, v61")
    A("v_cmp_eq_u32 s[36:37], 3, v61")

    def ploads():
        for i in range(4):
            A(f"buffer_load_dwordx4 v[{8 + 4 * i}:{11 + 4 * i}], v6, s[48:51], s54 offen offset:{1024 * i} sc1")
    poll2("p", ploads, 4, [8, 12, 16, 20], 24, p_thr, p_sleep, p_depth)
    stamp(11)
    for i in range(4):
        A(f"v_add_f32 v{44 + i}, v{8 + i}, v{12 + i}")
        A(f"v_add_f32 v{48 + i}, v{16 + i}, v{20 + i}")
    for i in range(4):
        A(f"v_add_f32 v{44 + i}, v{44 + i}, v{48 + i}")
    A("s_nop 1")
    for i in range(4):
        A(f"v_add_f32_dpp v{48 + i}, v{44 + i}, v{44 + i} row_ror:8 row_mask:0xf bank_mask:0xf")
    for i in range(4):
        A(f"v_mov_b32 v{44 + i}, v{48 + i}")
    A("s_nop 1")
    for i in range(4):
        A(f"v_permlane16_swap_b32 v{44 + i}, v{48 + i}")
    A("s_nop 1")
    for i in range(4):
        A(f"v_add_f32 v{48 + i}, v{44 + i}, v{48 + i}")
    for i in range(4):
        A(f"v_mov_b32 v{44 + i}, v{48 + i}")
    A("s_nop 1")
    for i in range(4):
        A(f"v_permlane32_swap_b32 v{44 + i}, v{48 + i}")
    A("s_nop 1")
    for i in range(4):
        A(f"v_add_f32 v{48 + i}, v{44 + i}, v{48 + i}")
    A("v_cndmask_b32 v48, v48, v49, s[32:33]")
    A("v_cndmask_b32 v48, v48, v50, s[34:35]")
    A("v_cndmask_b32 v48, v48, v51, s[36:37]")
    A("v_cvt_pk_bf16_f32 v48, v48, v48")
    A("s_mov_b32 exec_hi, 0")
    A("buffer_store_short v48, v60, s[44:47], s56 offen")
    A("s_cmp_lg_u32 s2, 0")
    A("s_cbranch_scc1 L_noep")
    A("s_mov_b64 exec, 1")
    A(f"s_mov_b32 s60, {SPIN_MAX}")
    A.label("L_epw")
    A("buffer_load_dword v54, v60, s[40:43], 0 offen sc1")
    A("s_waitcnt vmcnt(0)")
    A("v_readfirstlane_b32 s61, v54")
    A("s_cmp_ge_u32 s61, 256")
    A("s_cbranch_scc1 L_epok")
    A("s_sub_u32 s60, s60, 1")
    A("s_cmp_lg_u32 s60, 0")
    A("s_cbranch_scc1 L_epw")
    A.label("L_epok")
    A("v_mov_b32 v52, s62")
    A("v_mov_b32 v53, s63")
    A("buffer_store_dwordx2 v[52:53], v60, s[48:51], s65 offen")
    A.label("L_noep")
    A("s_mov_b64 exec, -1")
    stamp(12)
    A.label("L_hend")
    dump_stamps(13)
    A.label("L_end")
    A("s_endpgm")

    out = [HEADER.rstrip("\n")]
    out.append(f"; @launch grid=(256,1,1) block=(768,1,1) lds={LDS_BYTES}")
    out.append('.amdgcn_target "amdgcn-amd-amdhsa--gfx950"')
    out.append(".text")
    out.append(f".globl {NAME}")
    out.append(".p2align 8")
    out.append(f".type {NAME},@function")
    out += A.L
    out.append('.section .rodata,"a"')
    out.append(".p2align 6")
    out.append(f".amdhsa_kernel {NAME}")
    out.append("  .amdhsa_next_free_vgpr 168")
    out.append("  .amdhsa_next_free_sgpr 96")
    out.append("  .amdhsa_accum_offset 168")
    out.append("  .amdhsa_group_segment_fixed_size 0")
    out.append("  .amdhsa_kernarg_size 104")
    out.append("  .amdhsa_user_sgpr_count 2")
    out.append("  .amdhsa_user_sgpr_kernarg_segment_ptr 1")
    out.append("  .amdhsa_system_sgpr_workgroup_id_x 1")
    out.append(".end_amdhsa_kernel")
    return "\n".join(out) + "\n"


if __name__ == "__main__":
    import argparse
    ap = argparse.ArgumentParser()
    ap.add_argument("-o", default="concat_heads__sliding_block_cached__sliding_block_cached__decode.s")
    ap.add_argument("--instr", action="store_true")
    ap.add_argument("--ldflag", default="nt")
    for nm, dv in (("q_sleep0", 16), ("q_sleep", 16), ("wo_thr", 16), ("o_sleep", 8), ("o_depth", 4),
                   ("p_thr", 16), ("p_sleep", 8), ("p_depth", 4), ("prio", 1), ("exp", 0), ("remap", 1), ("xred", 1), ("gcopy", 3)):
        ap.add_argument("--" + nm.replace("_", "-"), type=int, default=dv)
    a = ap.parse_args()
    kw = vars(a).copy()
    o = kw.pop("o")
    open(o, "w").write(gen(**kw))
```

```python
import sys, math, struct

NAME = "concat_heads__sliding_block_cached__sliding_block_cached__decode_kernel"

HEADER = """; Kernarg layout for this problem (104 bytes, ptrs only, base s[0:1]):
"""

def f32bits(x):
    return struct.unpack("<I", struct.pack("<f", x))[0]

C_SCALE = f32bits(math.log2(math.e) / math.sqrt(128.0))

QP = 0x000000
OB = 0x100000
OW = 0x180000
PB = 0x200000
EP = 0x300000
TS = 0x400000
WS_BYTES = 285229056
GOFF = 0x800000
N_LOCAL = 256

L_C1, L_C2, L_C3, L_C5, L_C4 = 0, 4, 8, 12, 16
L_TG = 32
L_F6 = 48
L_QL = 64
L_ST = 1088
L_QR = 1536
QR_W = 4224
L_AP = L_QR + 4 * QR_W
AP_A = 2112
L_OL = L_AP + 8 * AP_A
LDS_BYTES = L_OL + 4 * 528

SPIN_MAX = 1 << 20


class Asm:
    def __init__(self):
        self.L = []
        self.nlab = 0

    def __call__(self, s):
        self.L.append("    " + s)

    def label(self, s):
        self.L.append(s + ":")

    def newlabel(self, pfx="L"):
        self.nlab += 1
        return f"{pfx}_{self.nlab}"


def gen(instr=False, ldflag="nt", q_sleep0=16, q_sleep=16,
        wo_thr=16, o_sleep=8, o_depth=4, p_thr=16, p_sleep=8, p_depth=4, prio=True, exp=0, remap=1, xred=1, gcopy=3,
        p_thr2=32, p_sleep2=32, o_thr2=64, o_sleep2=0, wo_mode=0, pre_k=0, wo_c5=0, o_pre=0, pretouch=0):
    A = Asm()

    def stamp(slot):
        if instr:
            A(f"s_memrealtime s[{66 + 2 * slot}:{67 + 2 * slot}]")

    def srd(d, lo, nbytes):
        A(f"s_mov_b32 s{d}, s{lo}")
        A(f"s_and_b32 s{d + 1}, s{lo + 1}, 0xffff")
        A(f"s_mov_b32 s{d + 2}, {nbytes}")
        A(f"s_mov_b32 s{d + 3}, 0x20000")

    def lds_wait_ge(addr_v, tmp_v, val, sleep=1):
        lab = A.newlabel("L_lw")
        done = A.newlabel("L_lwd")
        A(f"s_mov_b32 s60, {SPIN_MAX}")
        A.label(lab)
        A(f"ds_read_b32 v{tmp_v}, v{addr_v}")
        A("s_waitcnt lgkmcnt(0)")
        A(f"v_readfirstlane_b32 s61, v{tmp_v}")
        A(f"s_cmp_ge_u32 s61, {val}")
        A(f"s_cbranch_scc1 {done}")
        if sleep:
            A(f"s_sleep {sleep}")
        A("s_sub_u32 s60, s60, 1")
        A("s_cmp_lg_u32 s60, 0")
        A(f"s_cbranch_scc1 {lab}")
        A.label(done)

    def lds_inc(addr, va, vb):
        A(f"v_mov_b32 v{va}, 1")
        A(f"v_mov_b32 v{vb}, {addr}")
        A("s_mov_b64 exec, 1")
        A(f"ds_add_u32 v{vb}, v{va}")
        A("s_mov_b64 exec, -1")

    def dump_stamps(nslots):
        if not instr:
            return
        A("s_waitcnt lgkmcnt(0)")
        A("s_mul_i32 s60, s2, 12")
        A("s_add_u32 s60, s60, s6")
        A("s_lshl_b32 s60, s60, 7")
        A(f"s_add_u32 s60, s60, {TS}")
        A("s_mov_b64 exec, 1")
        A("v_mov_b32 v1, 0")
        for i in range(nslots):
            A(f"v_mov_b32 v2, s{66 + 2 * i}")
            A(f"v_mov_b32 v3, s{67 + 2 * i}")
            A(f"buffer_store_dwordx2 v[2:3], v1, s[48:51], s60 offen offset:{8 * i}")
            A("s_nop 1")
        A("s_mov_b64 exec, -1")

    def make_tags(TG):
        A("s_add_u32 s62, s62, 1")
        A("s_addc_u32 s63, s63, 0")
        A("s_and_b32 s54, s62, 0x3ff")
        A(f"v_mov_b32 v{TG}, s54")
        A("s_bfe_u32 s54, s62, 0xa000a")
        A(f"v_mov_b32 v{TG + 1}, s54")
        A("s_bfe_u32 s54, s62, 0xa0014")
        A(f"v_mov_b32 v{TG + 2}, s54")
        A("s_lshr_b64 s[54:55], s[62:63], 30")
        A("s_and_b32 s54, s54, 0x3ff")
        A(f"v_mov_b32 v{TG + 3}, s54")

    def tag4(r, TG):
        for i in range(4):
            A(f"v_bfi_b32 v{r + i}, s64, v{r + i}, v{TG + i}")

    A.label(NAME)
    stamp(0)
    A("s_cmp_ge_u32 s2, 256")
    A("s_cbranch_scc1 L_end")
    if remap:
        A("s_and_b32 s3, s2, 7")
        A("s_lshl_b32 s3, s3, 1")
        A("s_lshr_b32 s4, s2, 7")
        A("s_add_u32 s3, s3, s4")
        A("s_bfe_u32 s4, s2, 0x40003")
        A("s_lshl_b32 s92, s3, 4")
        A("s_add_u32 s92, s92, s4")
        A("s_and_b32 s5, s3, 7")
        A("s_lshr_b32 s93, s4, 1")
        A("s_lshl_b32 s93, s93, 3")
        A("s_add_u32 s93, s93, s5")
        A("s_lshl_b32 s93, s93, 1")
        A("s_and_b32 s4, s4, 1")
        A("s_add_u32 s93, s93, s4")
        A("s_lshr_b32 s3, s3, 3")
        A("s_lshl_b32 s4, s3, 7")
        A("s_add_u32 s93, s93, s4")
    else:
        A("s_lshr_b32 s3, s2, 7")
        A("s_mov_b32 s92, s2")
        A("s_mov_b32 s93, s2")
    A("s_mul_i32 s4, s3, 40")
    A("s_add_u32 s4, s0, s4")
    A("s_addc_u32 s5, s1, 0")
    A("s_load_dwordx8 s[8:15], s[4:5], 0")
    A("s_load_dwordx2 s[16:17], s[4:5], 32")
    A("s_load_dwordx4 s[20:23], s[0:1], 80")
    A("s_load_dwordx2 s[24:25], s[0:1], 96")
    A("v_lshrrev_b32 v1, 6, v0")
    A("v_mov_b32 v2, 0")
    A("v_readfirstlane_b32 s6, v1")
    A("v_and_b32 v1, 63, v0")
    A("s_and_b32 s26, s92, 127")
    A("s_and_b32 s94, s93, 127")
    A("v_lshrrev_b32 v4, 4, v1")
    A(f"s_mov_b32 s65, {EP}")
    A("s_mov_b32 s64, 0xfffffc00")
    A("s_cmp_lt_u32 s6, 4")
    A("s_cbranch_scc1 L_helper")

    KR, VR, QF, SR = 8, 72, 136, 152
    ACC, VT, PP = 8, 40, 136
    A("s_sub_u32 s7, s6, 4")
    A("s_lshr_b32 s36, s94, 1")
    A("s_lshl_b32 s36, s36, 20")
    A("s_and_b32 s37, s94, 1")
    A("s_lshl_b32 s37, s37, 17")
    A("s_add_u32 s36, s36, s37")
    A("s_lshl_b32 s37, s7, 14")
    A("s_add_u32 s36, s36, s37")
    A("s_add_u32 s36, s36, 786432")
    A("s_add_u32 s37, s36, 4096")
    A("s_add_u32 s38, s36, 8192")
    A("s_add_u32 s39, s36, 12288")
    A("v_and_b32 v2, 3, v1")
    A("v_lshlrev_b32 v2, 10, v2")
    A("v_bfe_u32 v3, v1, 2, 2")
    A("v_lshl_add_u32 v2, v3, 8, v2")
    A("v_lshl_add_u32 v2, v4, 4, v2")
    A("v_lshlrev_b32 v3, 4, v1")
    A("s_waitcnt lgkmcnt(0)")
    srd(28, 10, 67108864)
    srd(32, 12, 67108864)
    for T in range(4):
        for kk in range(4):
            if T * 4 + kk == pre_k:
                A("s_barrier")
            r = KR + (T * 4 + kk) * 4
            A(f"buffer_load_dwordx4 v[{r}:{r + 3}], v2, s[28:31], s{36 + T} offen offset:{kk * 64} {ldflag}")
    for i in range(16):
        r = VR + i * 4
        A(f"buffer_load_dwordx4 v[{r}:{r + 3}], v3, s[32:35], s{36 + i // 4} offen offset:{(i % 4) * 1024} {ldflag}")
    stamp(1)
    lds_inc(L_C4, 5, 6)
    srd(48, 24, WS_BYTES)
    A("v_and_b32 v7, 3, v1")
    A("v_lshlrev_b32 v7, 8, v7")
    A("v_lshl_add_u32 v7, v4, 4, v7")
    A(f"v_mov_b32 v6, {L_C3}")
    lds_wait_ge(6, 5, 4, sleep=2)
    stamp(2)
    if prio:
        A("s_setprio 1")
    for kk in range(4):
        A(f"ds_read_b128 v[{QF + 4 * kk}:{QF + 4 * kk + 3}], v7 offset:{L_QL + kk * 64}")
    A(f"s_mov_b32 s40, {C_SCALE}")
    A("s_mov_b32 s41, 0x05040100")
    A("s_mov_b32 s42, 0x07060302")
    A("s_waitcnt lgkmcnt(0)")
    for T in range(4):
        A(f"s_waitcnt vmcnt({28 - 4 * T})")
        for kk in range(4):
            r = KR + (T * 4 + kk) * 4
            c = "0" if kk == 0 else f"v[{SR + 4 * T}:{SR + 4 * T + 3}]"
            A(f"v_mfma_f32_16x16x32_bf16 v[{SR + 4 * T}:{SR + 4 * T + 3}], v[{r}:{r + 3}], v[{QF + 4 * kk}:{QF + 4 * kk + 3}], {c}")
    stamp(3)
    A("v_and_b32 v5, 3, v1")
    A("v_mul_u32_u24 v5, 528, v5")
    A("v_lshl_add_u32 v5, v4, 7, v5")
    A(f"s_mul_i32 s43, s7, {AP_A}")
    A(f"s_add_u32 s43, s43, {L_AP}")
    A("v_add_u32 v5, s43, v5")
    A("s_nop 3")
    A(f"v_max3_f32 v2, v{SR}, v{SR + 1}, v{SR + 2}")
    for i in range(3, 15, 2):
        A(f"v_max3_f32 v2, v2, v{SR + i}, v{SR + i + 1}")
    A(f"v_max_f32 v2, v2, v{SR + 15}")
    A("v_mov_b32 v3, v2")
    A("s_nop 1")
    A("v_permlane32_swap_b32 v2, v3")
    A("s_nop 1")
    A("v_max_f32 v2, v2, v3")
    A("v_mov_b32 v3, v2")
    A("s_nop 1")
    A("v_permlane16_swap_b32 v2, v3")
    A("s_nop 1")
    A("v_max_f32 v2, v2, v3")
    A("v_mul_f32 v2, s40, v2")
    for i in range(16):
        A(f"v_fma_f32 v{SR + i}, v{SR + i}, s40, -v2")
    for i in range(16):
        A(f"v_exp_f32 v{SR + i}, v{SR + i}")
    A("s_nop 0")
    for u in range(8):
        A(f"v_cvt_pk_bf16_f32 v{PP + u}, v{SR + 2 * u}, v{SR + 2 * u + 1}")
    A(f"v_add_f32 v3, v{SR}, v{SR + 1}")
    A(f"v_add_f32 v6, v{SR + 2}, v{SR + 3}")
    for i in range(4, 16, 2):
        A(f"v_add_f32 v3, v3, v{SR + i}")
        A(f"v_add_f32 v6, v6, v{SR + i + 1}")
    A("v_add_f32 v3, v3, v6")
    A("v_mov_b32 v6, v3")
    A("s_nop 1")
    A("v_permlane32_swap_b32 v3, v6")
    A("s_nop 1")
    A("v_add_f32 v3, v3, v6")
    A("v_mov_b32 v6, v3")
    A("s_nop 1")
    A("v_permlane16_swap_b32 v3, v6")
    A("s_nop 1")
    A("v_add_f32 v3, v3, v6")
    A("v_lshlrev_b32 v6, 5, v1")
    A("s_lshl_b32 s43, s7, 2")
    A(f"s_add_u32 s43, s43, {L_ST}")
    A("v_add_u32 v6, s43, v6")
    A("s_mov_b64 exec, 15")
    A("ds_write_b32 v6, v2")
    A("ds_write_b32 v6, v3 offset:128")
    A("s_mov_b64 exec, -1")
    ATG = 144
    A(f"v_mov_b32 v7, {L_TG}")
    A(f"ds_read_b128 v[{ATG}:{ATG + 3}], v7")
    A("s_and_b32 s43, s7, 3")
    A("s_lshl_b32 s56, s93, 11")
    A("s_lshl_b32 s55, s43, 9")
    A("s_add_u32 s56, s56, s55")
    A(f"s_add_u32 s56, s56, {OB}")
    A("s_lshl_b32 s57, s93, 6")
    A("s_lshl_b32 s55, s43, 4")
    A("s_add_u32 s57, s57, s55")
    A(f"s_add_u32 s57, s57, {OW}")
    A("v_and_b32 v2, 31, v1")
    A("v_lshlrev_b32 v2, 4, v2")
    A("s_mul_i32 s54, s43, 528")
    A(f"s_add_u32 s54, s54, {L_AP}")
    A("v_add_u32 v3, s54, v2")
    A("s_lshl_b32 s54, s43, 5")
    A(f"s_add_u32 s54, s54, {L_ST}")
    A("v_mov_b32 v6, s54")
    A(f"v_mov_b32 v7, {L_C5}")
    A("v_mov_b32 v148, 1")
    for G in range(2):
        for u in range(4):
            A(f"s_waitcnt vmcnt({15 - (8 * G + 2 * u + 1)})")
            r0 = VR + (8 * G + 2 * u) * 4
            r1 = r0 + 4
            for t in range(8):
                sel = "s41" if (t & 1) == 0 else "s42"
                A(f"v_perm_b32 v{VT + 4 * t + u}, v{r1 + (t >> 1)}, v{r0 + (t >> 1)}, {sel}")
        A("s_nop 1")
        for t in range(8):
            c = "0" if G == 0 else f"v[{ACC + 4 * t}:{ACC + 4 * t + 3}]"
            A(f"v_mfma_f32_16x16x32_bf16 v[{ACC + 4 * t}:{ACC + 4 * t + 3}], v[{VT + 4 * t}:{VT + 4 * t + 3}], v[{PP + 4 * G}:{PP + 4 * G + 3}], {c}")
    stamp(4)
    A("s_mov_b32 exec_lo, 0x000f000f")
    A("s_mov_b32 exec_hi, 0x000f000f")
    A("s_nop 0")
    for t in range(8):
        if t == 7:
            A("s_nop 0")
        A(f"ds_write_b128 v5, v[{ACC + 4 * t}:{ACC + 4 * t + 3}] offset:{16 * t}")
    A("s_mov_b64 exec, 1")
    A("s_waitcnt lgkmcnt(0)")
    A("ds_add_u32 v7, v148")
    A("s_mov_b64 exec, -1")
    A("s_cmp_lt_u32 s7, 4")
    A("s_cbranch_scc1 L_aend")
    if prio:
        A("s_setprio 0")
    lds_wait_ge(7, 149, 8, sleep=0)
    if prio:
        A("s_setprio 1")
    stamp(5)
    CB, OA = 72, 8
    A(f"ds_read_b128 v[{CB}:{CB + 3}], v6")
    A(f"ds_read_b128 v[{CB + 4}:{CB + 7}], v6 offset:16")
    A(f"ds_read_b128 v[{CB + 8}:{CB + 11}], v6 offset:128")
    A(f"ds_read_b128 v[{CB + 12}:{CB + 15}], v6 offset:144")
    for a in range(8):
        A(f"ds_read_b128 v[{OA + 4 * a}:{OA + 4 * a + 3}], v3 offset:{a * AP_A}")
    A("s_waitcnt lgkmcnt(10)" if not instr else "s_waitcnt lgkmcnt(0)")
    A(f"v_max3_f32 v90, v{CB}, v{CB + 1}, v{CB + 2}")
    A(f"v_max3_f32 v90, v90, v{CB + 3}, v{CB + 4}")
    A(f"v_max3_f32 v90, v90, v{CB + 5}, v{CB + 6}")
    A(f"v_max_f32 v90, v90, v{CB + 7}")
    for a in range(8):
        A(f"v_sub_f32 v{CB + a}, v{CB + a}, v90")
    for a in range(8):
        A(f"v_exp_f32 v{CB + a}, v{CB + a}")
    A("s_waitcnt lgkmcnt(8)" if not instr else "s_waitcnt lgkmcnt(0)")
    A(f"v_mul_f32 v91, v{CB}, v{CB + 8}")
    for a in range(1, 8):
        A(f"v_fmac_f32 v91, v{CB + a}, v{CB + 8 + a}")
    A("v_rcp_f32 v92, v91")
    A("v_log_f32 v93, v91")
    A("s_waitcnt lgkmcnt(0)")
    for i in range(4):
        A(f"v_mul_f32 v{96 + i}, v{CB}, v{OA + i}")
    for a in range(1, 8):
        for i in range(4):
            A(f"v_fmac_f32 v{96 + i}, v{CB + a}, v{OA + 4 * a + i}")
    A("v_add_f32 v93, v93, v90")
    for i in range(4):
        A(f"v_mul_f32 v{96 + i}, v92, v{96 + i}")
    tag4(96, ATG)
    A("s_mov_b32 exec_hi, 0")
    A("buffer_store_dwordx4 v[96:99], v2, s[48:51], s56 offen")
    A("v_and_b32 v94, s64, v93")
    A("v_sub_f32 v94, v93, v94")
    A(f"v_bfi_b32 v100, s64, v93, v{ATG}")
    A(f"v_bfi_b32 v101, s64, v94, v{ATG + 1}")
    A(f"v_bfi_b32 v102, s64, v93, v{ATG + 2}")
    A(f"v_bfi_b32 v103, s64, v93, v{ATG + 3}")
    A("s_mov_b64 exec, 1")
    A("buffer_store_dwordx4 v[100:103], v2, s[48:51], s57 offen")
    A("s_mul_i32 s54, s43, 528")
    A(f"s_add_u32 s54, s54, {L_OL}")
    A("s_lshl_b32 s55, s43, 2")
    A(f"s_add_u32 s55, s55, {L_F6}")
    A("v_mov_b32 v104, s55")
    A("s_mov_b32 exec_lo, -1")
    A("v_add_u32 v105, s54, v2")
    A("ds_write_b128 v105, v[96:99]")
    A("s_mov_b64 exec, 1")
    A("ds_write_b128 v105, v[100:103] offset:512")
    A("s_waitcnt lgkmcnt(0)")
    A("ds_write_b32 v104, v148")
    A("s_mov_b64 exec, -1")
    stamp(6)
    A.label("L_aend")
    dump_stamps(7)
    A("s_endpgm")

    A.label("L_helper")
    W, XF, HT, HACC = 8, 40, 44, 76
    TG = 108
    PO = 144
    A("v_mov_b32 v8, 0")
    A("v_mov_b32 v9, 0")
    A("v_mov_b32 v10, 0")
    A("v_mov_b32 v11, 0")
    A("s_cmp_lg_u32 s6, 0")
    A("s_cbranch_scc1 L_noinit")
    A("ds_write_b128 v2, v[8:11]")
    A("ds_write_b128 v2, v[8:11] offset:16")
    A("ds_write_b128 v2, v[8:11] offset:48")
    A.label("L_noinit")
    A("s_lshr_b32 s27, s26, 2")
    A("s_and_b32 s52, s26, 3")
    A("v_and_b32 v5, 15, v1")
    A("v_and_b32 v2, 7, v1")
    A("v_lshlrev_b32 v2, 10, v2")
    A("v_lshl_add_u32 v2, v4, 4, v2")
    A("s_lshl_b32 s53, s52, 7")
    A("s_lshl_b32 s54, s6, 5")
    A("s_add_u32 s53, s53, s54")
    A("s_lshl_b32 s54, s53, 1")
    A("v_lshlrev_b32 v3, 16, v4")
    A("v_lshl_add_u32 v3, v5, 4, v3")
    A("s_lshl_b32 s56, s53, 13")
    A("s_lshl_b32 s55, s27, 8")
    A("s_add_u32 s56, s56, s55")
    A("s_waitcnt lgkmcnt(0)")
    srd(28, 8, 8192)
    srd(32, 14, 4194304)
    A(f"buffer_load_dwordx4 v[{XF}:{XF + 3}], v2, s[28:31], s54 offen")
    for e in range(8):
        A(f"buffer_load_dwordx4 v[{W + 4 * e}:{W + 4 * e + 3}], v3, s[32:35], s56 offen {ldflag}")
        if e < 7:
            A("s_add_u32 s56, s56, 8192")
    srd(36, 16, 4194304)
    if wo_mode == 2:
        A("v_lshlrev_b32 v115, 11, v4")
        A("v_lshl_add_u32 v115, v5, 4, v115")
        A("s_lshl_b32 s56, s27, 7")
        A("s_lshl_b32 s55, s6, 5")
        A("s_add_u32 s56, s56, s55")
        A("s_lshl_b32 s56, s56, 10")
        A("s_lshl_b32 s55, s52, 8")
        A("s_add_u32 s56, s56, s55")
        for e in range(8):
            A(f"s_add_u32 s57, s56, {8 * (e & 3) * 1024}")
            A(f"buffer_load_dwordx4 v[{136 + 4 * e}:{136 + 4 * e + 3}], v115, s[36:39], s57 offen offset:{(e >> 2) * 1024} {ldflag}")
    A("s_barrier")
    srd(44, 20, 16384)
    srd(40, 22, 256)
    srd(48, 24, WS_BYTES)
    A("v_lshlrev_b32 v6, 4, v1")
    A("s_mov_b32 s58, 0x05040100")
    A("s_mov_b32 s59, 0x07060302")
    if pretouch:
        A("v_and_b32 v160, 31, v1")
        A("v_lshlrev_b32 v160, 4, v160")
        A("v_lshrrev_b32 v161, 5, v1")
        A("v_lshl_add_u32 v160, v161, 10, v160")
        A("s_lshr_b32 s54, s94, 1")
        A("s_lshl_b32 s54, s54, 13")
        A("s_lshl_b32 s55, s3, 19")
        A("s_add_u32 s54, s54, s55")
        A("s_lshl_b32 s55, s6, 11")
        A("s_add_u32 s54, s54, s55")
        if pretouch & 1:
            A("buffer_load_dwordx4 v[120:123], v160, s[48:51], s54 offen")
            A("buffer_load_dwordx4 v[124:127], v160, s[48:51], s54 offen offset:512")
        A("v_and_b32 v161, 7, v1")
        A("v_lshlrev_b32 v161, 4, v161")
        A("v_bfe_u32 v162, v1, 3, 1")
        A("v_add_u32 v161, v161, v162")
        A("s_lshr_b32 s54, s27, 2")
        A("s_lshl_b32 s54, s54, 1")
        A("s_lshl_b32 s55, s3, 7")
        A("s_add_u32 s54, s54, s55")
        A("v_add_u32 v161, s54, v161")
        A("v_lshlrev_b32 v162, 6, v161")
        A("v_lshlrev_b32 v161, 11, v161")
        A("v_lshl_add_u32 v161, v4, 5, v161")
        A("s_and_b32 s55, s27, 3")
        A("s_lshl_b32 s54, s55, 9")
        A("s_lshl_b32 s53, s6, 7")
        A("s_add_u32 s54, s54, s53")
        A(f"s_add_u32 s54, s54, {OB}")
        A("s_lshl_b32 s55, s55, 4")
        A(f"s_add_u32 s55, s55, {OW}")
        if pretouch & 2:
            A(f"buffer_load_dwordx4 v[{PO}:{PO + 3}], v161, s[48:51], s54 offen")
            A(f"buffer_load_dwordx4 v[{PO + 8}:{PO + 11}], v162, s[48:51], s55 offen")
    A("s_mov_b32 s28, 0")
    A("s_mov_b32 s29, 0")
    A("s_cmp_lg_u32 s6, 0")
    A("s_cbranch_scc1 L_noepoch")
    A("s_load_dwordx2 s[62:63], s[24:25], s65")
    A("s_waitcnt lgkmcnt(0)")
    make_tags(TG)
    A(f"v_mov_b32 v113, {L_TG}")
    A("s_mov_b64 exec, 1")
    A(f"ds_write_b128 v113, v[{TG}:{TG + 3}]")
    A("s_mov_b64 exec, -1")
    A.label("L_noepoch")

    def transpose(first_wait, W=W):
        for u in range(4):
            if first_wait is not None:
                A(f"s_waitcnt vmcnt({first_wait - (2 * u + 1)})")
            r0 = W + 8 * u
            r1 = r0 + 4
            for t in range(8):
                sel = "s58" if (t & 1) == 0 else "s59"
                A(f"v_perm_b32 v{HT + 4 * t + u}, v{r1 + (t >> 1)}, v{r0 + (t >> 1)}, {sel}")

    def do_mfma(bop):
        for t in range(8):
            A(f"v_mfma_f32_16x16x32_bf16 v[{HACC + 4 * t}:{HACC + 4 * t + 3}], v[{HT + 4 * t}:{HT + 4 * t + 3}], v[{bop}:{bop + 3}], 0")

    def check(regs4, tmp):
        n = 0
        for r in regs4:
            for i in range(4):
                A(f"v_xor_b32 v{tmp + n}, v{r + i}, v{TG + i}")
                n += 1
        live = list(range(tmp, tmp + n))
        while len(live) > 1:
            nxt = []
            while len(live) >= 3:
                a, b, c = live[:3]
                live = live[3:]
                A(f"v_or3_b32 v{a}, v{a}, v{b}, v{c}")
                nxt.append(a)
            if len(live) == 2 and not nxt:
                A(f"v_or_b32 v{live[0]}, v{live[0]}, v{live[1]}")
                nxt.append(live[0])
                live = []
            live = nxt + live
        A(f"v_and_b32 v{live[0]}, 0x3ff, v{live[0]}")
        A(f"v_cmp_ne_u32 vcc, 0, v{live[0]}")

    def pub_q_global(name):
        A("s_cmp_lg_u32 s28, 0")
        A(f"s_cbranch_scc1 L_pq_{name}")
        A("s_mov_b64 s[30:31], exec")
        A("s_mov_b64 exec, -1")
        A(f"s_add_u32 s95, s95, {GOFF}")
        A("buffer_store_dwordx4 v[116:119], v0, s[48:51], s95 offen sc1")
        A("s_mov_b32 s28, 1")
        A("s_mov_b64 exec, s[30:31]")
        A.label(f"L_pq_{name}")

    def pub_o_global(name, wait):
        A("s_cmp_lg_u32 s29, 0")
        A(f"s_cbranch_scc1 L_po_{name}")
        A("s_mov_b64 s[30:31], exec")
        A("s_mov_b64 exec, -1")
        A("s_lshl_b32 s32, s6, 2")
        A(f"s_add_u32 s32, s32, {L_F6}")
        A("v_mov_b32 v137, s32")
        if wait:
            A("s_mov_b32 s33, s60")
            lds_wait_ge(137, 138, 1, sleep=1)
            A("s_mov_b32 s60, s33")
        else:
            A("ds_read_b32 v138, v137")
            A("s_waitcnt lgkmcnt(0)")
            A("v_readfirstlane_b32 s32, v138")
            A("s_cmp_eq_u32 s32, 0")
            A(f"s_cbranch_scc1 L_por_{name}")
        A("s_mul_i32 s32, s6, 528")
        A(f"s_add_u32 s32, s32, {L_OL}")
        A("v_lshlrev_b32 v137, 4, v3")
        A("v_add_u32 v138, s32, v137")
        A("v_mov_b32 v139, s32")
        A("ds_read_b128 v[140:143], v138")
        A("ds_read_b128 v[164:167], v139 offset:512")
        A("s_lshl_b32 s32, s93, 11")
        A("s_lshl_b32 s33, s6, 9")
        A("s_add_u32 s32, s32, s33")
        A(f"s_add_u32 s32, s32, {OB + GOFF}")
        A("s_lshl_b32 s34, s93, 6")
        A("s_lshl_b32 s33, s6, 4")
        A("s_add_u32 s34, s34, s33")
        A(f"s_add_u32 s34, s34, {OW + GOFF}")
        A("s_waitcnt lgkmcnt(0)")
        A("s_mov_b32 exec_hi, 0")
        A("buffer_store_dwordx4 v[140:143], v137, s[48:51], s32 offen sc1")
        A("s_mov_b64 exec, 1")
        A("buffer_store_dwordx4 v[164:167], v137, s[48:51], s34 offen sc1")
        A("s_mov_b32 s29, 1")
        A.label(f"L_por_{name}")
        A("s_mov_b64 exec, s[30:31]")
        A.label(f"L_po_{name}")

    def toggle(name, alt):
        if not alt:
            return
        A(f"s_cmp_gt_u32 s60, {SPIN_MAX - N_LOCAL}")
        A(f"s_cbranch_scc1 L_tg_{name}")
        for r in alt:
            A(f"s_xor_b32 s{r}, s{r}, {GOFF}")
        if name[0] == "q":
            pub_q_global(name)
        else:
            pub_o_global(name, False)
        A.label(f"L_tg_{name}")

    def poll2(name, loads, nl, regs4, tmp, thr, sleep, depth, mid=None, nmid=0, mid2=None, alt=(), thr2=64, sleep2=0, pre=None):
        A(f"s_mov_b32 s60, {SPIN_MAX}")
        if pre:
            loads()
            pre(nl)
            A(f"s_branch L_paw_{name}")
        A.label(f"L_pa_{name}")
        loads()
        A.label(f"L_paw_{name}")
        A("s_waitcnt vmcnt(0)")
        check(regs4, tmp)
        A("s_mov_b64 s[18:19], vcc")
        A(f"s_cbranch_vccz L_pam_{name}")
        A("s_bcnt1_i32_b64 s61, vcc")
        A(f"s_cmp_le_u32 s61, {thr}")
        A(f"s_cbranch_scc1 L_pam_{name}")
        A("s_mov_b64 exec, vcc")
        if sleep:
            A(f"s_sleep {sleep}")
        if sleep2:
            A(f"s_cmp_le_u32 s61, {thr2}")
            A(f"s_cbranch_scc1 L_ps2_{name}")
            A(f"s_sleep {sleep2}")
            A.label(f"L_ps2_{name}")
        toggle(name + "a", alt)
        A("s_sub_u32 s60, s60, 1")
        A("s_cmp_lg_u32 s60, 0")
        A(f"s_cbranch_scc1 L_pa_{name}")
        A.label(f"L_pam_{name}")
        A("s_mov_b64 exec, -1")
        if mid:
            mid()
        if thr == 0 and not mid:
            return
        A("s_cmp_eq_u64 s[18:19], 0")
        A(f"s_cbranch_scc1 L_pnm_{name}")
        A("s_mov_b64 exec, s[18:19]")
        for d in range(depth):
            loads()
        if mid2:
            A("s_mov_b64 exec, -1")
            mid2(nl * depth)
            A("s_mov_b64 exec, s[18:19]")
        A.label(f"L_pb_{name}")
        A(f"s_waitcnt vmcnt({nl * (depth - 1)})")
        if alt and depth > 1:
            A(f"s_cmp_gt_u32 s60, {SPIN_MAX - N_LOCAL}")
            A(f"s_cbranch_scc1 L_pbn_{name}")
            A("s_waitcnt vmcnt(0)")
            A.label(f"L_pbn_{name}")
        check(regs4, tmp)
        A(f"s_cbranch_vccz L_pok_{name}")
        A("s_mov_b64 exec, vcc")
        toggle(name + "b", alt)
        loads()
        A("s_sub_u32 s60, s60, 1")
        A("s_cmp_lg_u32 s60, 0")
        A(f"s_cbranch_scc1 L_pb_{name}")
        A(f"s_branch L_pok_{name}")
        A.label(f"L_pnm_{name}")
        if mid2:
            mid2(0)
        A.label(f"L_pok_{name}")
        A("s_mov_b64 exec, -1")

    transpose((15 if wo_mode == 2 else 7) + 2 * (pretouch & 1) + (pretouch & 2))
    stamp(1)
    A("v_mul_u32_u24 v7, 528, v5")
    A("v_lshl_add_u32 v7, v4, 7, v7")
    A(f"s_mul_i32 s54, s6, {QR_W}")
    A(f"s_add_u32 s54, s54, {L_QR}")
    A("v_add_u32 v7, s54, v7")
    do_mfma(XF)
    A("v_lshrrev_b32 v2, 5, v1")
    A("s_lshl_b32 s54, s6, 1")
    A("v_add_u32 v2, s54, v2")
    A("v_and_b32 v3, 31, v1")
    A("v_mul_u32_u24 v112, 528, v2")
    A("v_lshl_add_u32 v112, v3, 4, v112")
    A(f"v_add_u32 v112, {L_QR}, v112")

    def reduce_helpers(cnt, tags=False):
        A(f"v_mov_b32 v132, {cnt}")
        A("v_mov_b32 v133, 1")
        A("s_mov_b32 exec_lo, 0x00ff00ff")
        A("s_mov_b32 exec_hi, 0x00ff00ff")
        for t in range(8):
            A(f"ds_write_b128 v7, v[{HACC + 4 * t}:{HACC + 4 * t + 3}] offset:{16 * t}")
        A("s_mov_b64 exec, 1")
        A("s_waitcnt lgkmcnt(0)")
        A("ds_add_u32 v132, v133")
        A("s_mov_b64 exec, -1")
        lds_wait_ge(132, 133, 4, sleep=0)
        if tags:
            A(f"v_mov_b32 v132, {L_TG}")
            A(f"ds_read_b128 v[{TG}:{TG + 3}], v132")
        for w in range(4):
            A(f"ds_read_b128 v[{116 + 4 * w}:{119 + 4 * w}], v112 offset:{w * QR_W}")
        A("s_waitcnt lgkmcnt(0)")
        for i in range(4):
            A(f"v_add_f32 v{116 + i}, v{116 + i}, v{120 + i}")
            A(f"v_add_f32 v{124 + i}, v{124 + i}, v{128 + i}")
        for i in range(4):
            A(f"v_add_f32 v{116 + i}, v{116 + i}, v{124 + i}")

    if pretouch:
        A("s_waitcnt vmcnt(0)")
    reduce_helpers(L_C1, tags=True)
    tag4(116, TG)
    A("v_lshlrev_b32 v0, 16, v2")
    A("v_lshl_add_u32 v0, v3, 4, v0")
    A("s_lshl_b32 s95, s3, 19")
    A("s_lshl_b32 s55, s27, 11")
    A("s_add_u32 s95, s95, s55")
    A("s_lshl_b32 s55, s52, 9")
    A("s_add_u32 s95, s95, s55")
    if QP:
        A(f"s_add_u32 s95, s95, {QP}")
    if not (exp & 2):
        A("buffer_store_dwordx4 v[116:119], v0, s[48:51], s95 offen")
    stamp(2)
    A("s_lshr_b32 s54, s94, 1")
    A("s_lshl_b32 s54, s54, 13")
    A("s_lshl_b32 s55, s3, 19")
    A("s_add_u32 s54, s54, s55")
    A("s_lshl_b32 s55, s6, 11")
    A("s_add_u32 s54, s54, s55")
    if QP:
        A(f"s_add_u32 s54, s54, {QP}")
    A("v_lshrrev_b32 v113, 5, v1")
    A("v_lshlrev_b32 v113, 10, v113")
    A("v_lshl_add_u32 v113, v3, 4, v113")
    A("v_lshrrev_b32 v114, 3, v3")
    A("v_lshlrev_b32 v114, 6, v114")
    A("v_and_b32 v115, 7, v3")
    A("v_lshl_add_u32 v114, v115, 1, v114")
    A("s_lshl_b32 s55, s6, 8")
    A(f"s_add_u32 s55, s55, {L_QL}")
    A("v_add_u32 v114, s55, v114")
    if q_sleep0:
        A(f"s_sleep {q_sleep0}")

    def qloads():
        A("buffer_load_dwordx4 v[120:123], v113, s[48:51], s54 offen sc1")
        A("buffer_load_dwordx4 v[124:127], v113, s[48:51], s54 offen offset:512 sc1")
    if not (exp & 1):
        poll2("q", qloads, 2, [120, 124], 128, 0, q_sleep, 1, alt=(54,))
    stamp(3)
    for i in range(4):
        A(f"v_add_f32 v{120 + i}, v{120 + i}, v{124 + i}")
    for i in range(4):
        A(f"v_mov_b32 v{124 + i}, v{120 + i}")
    A("s_nop 1")
    for i in range(4):
        A(f"v_permlane32_swap_b32 v{120 + i}, v{124 + i}")
    A("s_nop 1")
    for i in range(4):
        A(f"v_add_f32 v{120 + i}, v{120 + i}, v{124 + i}")
    A("v_cvt_pk_bf16_f32 v120, v120, v121")
    A("v_cvt_pk_bf16_f32 v122, v122, v123")
    A("s_mov_b32 exec_hi, 0")
    A("ds_write_b16 v114, v120")
    A("ds_write_b16_d16_hi v114, v120 offset:16")
    A("ds_write_b16 v114, v122 offset:32")
    A("ds_write_b16_d16_hi v114, v122 offset:48")
    A("s_waitcnt lgkmcnt(0)")
    A("s_mov_b64 exec, -1")
    lds_inc(L_C3, 113, 114)
    stamp(4)
    if wo_mode == 2:
        transpose(None, 136)
    A("s_cmp_lg_u32 s6, 0")
    A("s_cbranch_scc1 L_noarr")
    A("v_mov_b32 v115, 0")
    A("s_mov_b64 exec, 1")
    A("buffer_atomic_add v113, v115, s[40:43], 0 offen")
    A("s_mov_b64 exec, -1")
    A.label("L_noarr")
    A("v_lshlrev_b32 v115, 11, v4")
    A("v_lshl_add_u32 v115, v5, 4, v115")
    A("s_lshl_b32 s56, s27, 7")
    A("s_lshl_b32 s55, s6, 5")
    A("s_add_u32 s56, s56, s55")
    A("s_lshl_b32 s56, s56, 10")
    A("s_lshl_b32 s55, s52, 8")
    A("s_add_u32 s56, s56, s55")
    A("v_and_b32 v113, 7, v1")
    A("v_lshlrev_b32 v113, 4, v113")
    A("v_bfe_u32 v114, v1, 3, 1")
    A("v_add_u32 v113, v113, v114")
    A("s_lshr_b32 s54, s27, 2")
    A("s_lshl_b32 s54, s54, 1")
    A("s_lshl_b32 s55, s3, 7")
    A("s_add_u32 s54, s54, s55")
    A("v_add_u32 v113, s54, v113")
    A("v_lshlrev_b32 v114, 6, v113")
    A("v_lshlrev_b32 v113, 11, v113")
    A("v_lshl_add_u32 v113, v4, 5, v113")
    A("s_and_b32 s55, s27, 3")
    A("s_lshl_b32 s54, s55, 9")
    A("s_lshl_b32 s53, s6, 7")
    A("s_add_u32 s54, s54, s53")
    A(f"s_add_u32 s54, s54, {OB}")
    A("s_lshl_b32 s55, s55, 4")
    A(f"s_add_u32 s55, s55, {OW}")
    A("v_lshlrev_b32 v134, 2, v2")
    A("v_lshrrev_b32 v135, 3, v3")
    A("v_add_u32 v134, v134, v135")
    A("v_lshlrev_b32 v134, 12, v134")
    A("v_and_b32 v135, 7, v3")
    A("v_lshl_add_u32 v134, v135, 4, v134")
    A("s_lshl_b32 s53, s3, 19")
    A("s_lshl_b32 s57, s52, 17")
    A("s_add_u32 s53, s53, s57")
    A("s_lshl_b32 s57, s27, 7")
    A("s_add_u32 s53, s53, s57")
    A(f"s_add_u32 s53, s53, {PB}")
    A(f"v_mov_b32 v132, {L_C4}")
    lds_wait_ge(132, 133, 8, sleep=2)
    if wo_mode == 2:
        if gcopy & 1:
            pub_q_global("c4b")
        A(f"v_mov_b32 v132, {L_C5}")
        lds_wait_ge(132, 133, 8, sleep=1)
    stamp(5)
    if gcopy & 1:
        pub_q_global("c4")

    def oloads():
        A(f"buffer_load_dwordx4 v[{PO}:{PO + 3}], v113, s[48:51], s54 offen sc1")
        A(f"buffer_load_dwordx4 v[{PO + 4}:{PO + 7}], v113, s[48:51], s54 offen offset:16 sc1")
        A(f"buffer_load_dwordx4 v[{PO + 8}:{PO + 11}], v114, s[48:51], s55 offen sc1")

    def wo_issue():
        stamp(6)
        for e in range(8):
            A(f"s_add_u32 s57, s56, {8 * (e & 3) * 1024}")
            A(f"buffer_load_dwordx4 v[{W + 4 * e}:{W + 4 * e + 3}], v115, s[36:39], s57 offen offset:{(e >> 2) * 1024} {ldflag}")

    def wo_consume(n_after):
        transpose(7 + n_after)
        stamp(8)

    if wo_mode == 2:
        stamp(6)
        stamp(8)
        poll2("o", oloads, 3, [PO, PO + 4, PO + 8], 116, wo_thr, o_sleep, o_depth, alt=(54, 55), thr2=o_thr2, sleep2=o_sleep2)
    elif wo_mode == 0:
        if wo_c5:
            A(f"v_mov_b32 v132, {L_C5}")
            lds_wait_ge(132, 133, wo_c5, sleep=1)
        wo_issue()
        if not o_pre:
            wo_consume(0)
        poll2("o", oloads, 3, [PO, PO + 4, PO + 8], 116, wo_thr, o_sleep, o_depth, alt=(54, 55), thr2=o_thr2, sleep2=o_sleep2,
              pre=wo_consume if o_pre else None)
    else:
        poll2("o", oloads, 3, [PO, PO + 4, PO + 8], 116, wo_thr, o_sleep, o_depth, mid=wo_issue, nmid=8, mid2=wo_consume,
              alt=(54, 55), thr2=o_thr2, sleep2=o_sleep2)
    stamp(9)
    A(f"v_and_b32 v128, s64, v{PO + 8}")
    A(f"v_add_f32 v128, v128, v{PO + 9}")
    A("s_nop 1")
    A("v_mov_b32_dpp v129, v128 row_ror:8 row_mask:0xf bank_mask:0xf")
    A("v_sub_f32 v129, v129, v128")
    A("v_exp_f32 v129, v129")
    A("s_nop 0")
    A("v_add_f32 v129, 1.0, v129")
    A("v_rcp_f32 v129, v129")
    A("s_nop 0")
    for i in range(8):
        A(f"v_mul_f32 v{116 + i}, v129, v{PO + i}")
    for i in range(8):
        A(f"v_add_f32_dpp v{156 + i}, v{116 + i}, v{116 + i} row_ror:8 row_mask:0xf bank_mask:0xf")
    for u in range(4):
        A(f"v_cvt_pk_bf16_f32 v{XF + u}, v{156 + 2 * u}, v{156 + 2 * u + 1}")
    A("s_nop 1")
    do_mfma(XF)
    A("s_nop 3")
    reduce_helpers(L_C2)
    tag4(116, TG)
    A("buffer_store_dwordx4 v[116:119], v134, s[48:51], s53 offen sc1")
    stamp(10)
    if gcopy & 2:
        pub_o_global("end", True)
    A("s_cmp_eq_u32 s6, 0")
    A("s_cbranch_scc1 L_final")
    A("s_cmp_lg_u32 s6, 1")
    A("s_cbranch_scc1 L_hend")
    A("s_cmp_lg_u32 s2, 0")
    A("s_cbranch_scc1 L_hend")
    A("s_load_dwordx2 s[62:63], s[24:25], s65")
    A("s_waitcnt lgkmcnt(0)")
    A("s_add_u32 s62, s62, 1")
    A("s_addc_u32 s63, s63, 0")
    A("v_mov_b32 v60, 0")
    A("s_mov_b64 exec, 1")
    A(f"s_mov_b32 s60, {SPIN_MAX}")
    A.label("L_epw")
    A("buffer_load_dword v54, v60, s[40:43], 0 offen sc1")
    A("s_waitcnt vmcnt(0)")
    A("v_readfirstlane_b32 s61, v54")
    A("s_cmp_ge_u32 s61, 256")
    A("s_cbranch_scc1 L_epok")
    A("s_sub_u32 s60, s60, 1")
    A("s_cmp_lg_u32 s60, 0")
    A("s_cbranch_scc1 L_epw")
    A.label("L_epok")
    A("v_mov_b32 v52, s62")
    A("v_mov_b32 v53, s63")
    A("buffer_store_dwordx2 v[52:53], v60, s[48:51], s65 offen")
    A("s_mov_b64 exec, -1")
    A("s_branch L_hend")
    A.label("L_final")
    if xred:
        A("s_xor_b32 s92, s92, 128")
        A("s_xor_b32 s3, s3, 1")
    A("s_lshl_b32 s54, s92, 12")
    A(f"s_add_u32 s54, s54, {PB}")
    A("s_bfe_u32 s56, s26, 0x30002")
    A("s_lshl_b32 s56, s56, 11")
    A("s_lshl_b32 s55, s3, 10")
    A("s_add_u32 s56, s56, s55")
    A("s_lshr_b32 s55, s26, 5")
    A("s_lshl_b32 s55, s55, 8")
    A("s_add_u32 s56, s56, s55")
    A("s_and_b32 s55, s26, 3")
    A("s_lshl_b32 s55, s55, 6")
    A("s_add_u32 s56, s56, s55")
    A("v_lshlrev_b32 v60, 1, v1")
    A("v_bfe_u32 v61, v1, 3, 2")
    A("v_cmp_eq_u32 s[32:33], 1, v61")
    A("v_cmp_eq_u32 s[34:35], 2, v61")
    A("v_cmp_eq_u32 s[36:37], 3, v61")

    def ploads():
        for i in range(4):
            A(f"buffer_load_dwordx4 v[{8 + 4 * i}:{11 + 4 * i}], v6, s[48:51], s54 offen offset:{1024 * i} sc1")
    poll2("p", ploads, 4, [8, 12, 16, 20], 24, p_thr, p_sleep, p_depth, thr2=p_thr2, sleep2=p_sleep2)
    stamp(11)
    for i in range(4):
        A(f"v_add_f32 v{44 + i}, v{8 + i}, v{12 + i}")
        A(f"v_add_f32 v{48 + i}, v{16 + i}, v{20 + i}")
    for i in range(4):
        A(f"v_add_f32 v{44 + i}, v{44 + i}, v{48 + i}")
    A("s_nop 1")
    for i in range(4):
        A(f"v_add_f32_dpp v{48 + i}, v{44 + i}, v{44 + i} row_ror:8 row_mask:0xf bank_mask:0xf")
    for i in range(4):
        A(f"v_mov_b32 v{44 + i}, v{48 + i}")
    A("s_nop 1")
    for i in range(4):
        A(f"v_permlane16_swap_b32 v{44 + i}, v{48 + i}")
    A("s_nop 1")
    for i in range(4):
        A(f"v_add_f32 v{48 + i}, v{44 + i}, v{48 + i}")
    for i in range(4):
        A(f"v_mov_b32 v{44 + i}, v{48 + i}")
    A("s_nop 1")
    for i in range(4):
        A(f"v_permlane32_swap_b32 v{44 + i}, v{48 + i}")
    A("s_nop 1")
    for i in range(4):
        A(f"v_add_f32 v{48 + i}, v{44 + i}, v{48 + i}")
    A("v_cndmask_b32 v48, v48, v49, s[32:33]")
    A("v_cndmask_b32 v48, v48, v50, s[34:35]")
    A("v_cndmask_b32 v48, v48, v51, s[36:37]")
    A("v_cvt_pk_bf16_f32 v48, v48, v48")
    A("s_mov_b32 exec_hi, 0")
    A("buffer_store_short v48, v60, s[44:47], s56 offen")
    A("s_mov_b64 exec, -1")
    stamp(12)
    A.label("L_hend")
    dump_stamps(13)
    A.label("L_end")
    A("s_endpgm")

    out = [HEADER.rstrip("\n")]
    out.append(f"; @launch grid=(256,1,1) block=(768,1,1) lds={LDS_BYTES}")
    out.append('.amdgcn_target "amdgcn-amd-amdhsa--gfx950"')
    out.append(".text")
    out.append(f".globl {NAME}")
    out.append(".p2align 8")
    out.append(f".type {NAME},@function")
    out += A.L
    out.append('.section .rodata,"a"')
    out.append(".p2align 6")
    out.append(f".amdhsa_kernel {NAME}")
    out.append("  .amdhsa_next_free_vgpr 168")
    out.append("  .amdhsa_next_free_sgpr 96")
    out.append("  .amdhsa_accum_offset 168")
    out.append("  .amdhsa_group_segment_fixed_size 0")
    out.append("  .amdhsa_kernarg_size 104")
    out.append("  .amdhsa_user_sgpr_count 2")
    out.append("  .amdhsa_user_sgpr_kernarg_segment_ptr 1")
    out.append("  .amdhsa_system_sgpr_workgroup_id_x 1")
    out.append(".end_amdhsa_kernel")
    return "\n".join(out) + "\n"


if __name__ == "__main__":
    import argparse
    ap = argparse.ArgumentParser()
    ap.add_argument("-o", default="concat_heads__sliding_block_cached__sliding_block_cached__decode.s")
    ap.add_argument("--instr", action="store_true")
    ap.add_argument("--ldflag", default="nt")
    for nm, dv in (("q_sleep0", 16), ("q_sleep", 16), ("wo_thr", 16), ("o_sleep", 8), ("o_depth", 4),
                   ("p_thr", 16), ("p_sleep", 8), ("p_depth", 4), ("prio", 1), ("exp", 0), ("remap", 1), ("xred", 1), ("gcopy", 3), ("p_thr2", 32), ("p_sleep2", 32), ("o_thr2", 64), ("o_sleep2", 0), ("wo_mode", 0), ("pre_k", 0), ("wo_c5", 0), ("o_pre", 0), ("pretouch", 0)):
        ap.add_argument("--" + nm.replace("_", "-"), type=int, default=dv)
    a = ap.parse_args()
    kw = vars(a).copy()
    o = kw.pop("o")
    open(o, "w").write(gen(**kw))
```

```python
import sys, math, struct

NAME = "concat_heads__sliding_block_cached__sliding_block_cached__decode_kernel"

HEADER = """; Kernarg layout for this problem (104 bytes, ptrs only, base s[0:1]):
;
"""

def f32bits(x):
    return struct.unpack("<I", struct.pack("<f", x))[0]

C_SCALE = f32bits(math.log2(math.e) / math.sqrt(128.0))

QP = 0x000000
OB = 0x100000
OW = 0x180000
PB = 0x200000
EP = 0x300000
TS = 0x400000
WS_BYTES = 285229056
GOFF = 0x800000
N_LOCAL = 256

L_C1, L_C2, L_C3, L_C5, L_C4 = 0, 4, 8, 12, 16
L_TG = 32
L_F6 = 48
L_QL = 64
L_ST = 1088
L_QR = 1536
QR_W = 4224
L_AP = L_QR + 4 * QR_W
AP_A = 2112
L_OL = L_AP + 8 * AP_A
LDS_BYTES = L_OL + 4 * 528

SPIN_MAX = 1 << 20


class Asm:
    def __init__(self):
        self.L = []
        self.nlab = 0

    def __call__(self, s):
        self.L.append("    " + s)

    def label(self, s):
        self.L.append(s + ":")

    def newlabel(self, pfx="L"):
        self.nlab += 1
        return f"{pfx}_{self.nlab}"


def gen(instr=False, ldflag="nt", q_sleep=4, o_thr=16, o_sleep=1, o_depth=3, p_thr=16, p_sleep=2, p_depth=3,
        remap=1, pre_k=4, wo_c5=0, dry=3):
    A = Asm()

    def stamp(slot):
        if instr:
            A(f"s_memrealtime s[{66 + 2 * slot}:{67 + 2 * slot}]")

    def srd(d, lo, nbytes):
        A(f"s_mov_b32 s{d}, s{lo}")
        A(f"s_and_b32 s{d + 1}, s{lo + 1}, 0xffff")
        A(f"s_mov_b32 s{d + 2}, {nbytes}")
        A(f"s_mov_b32 s{d + 3}, 0x20000")

    def ex_all():
        A("s_mov_b64 exec, s[96:97]")

    def ex_c(c):
        A(f"s_and_b64 exec, s[96:97], {c}")

    def ex_pat(p):
        A(f"s_and_b32 exec_lo, s96, {p:#x}")
        A(f"s_and_b32 exec_hi, s97, {p:#x}")

    def ex_lo32():
        A("s_mov_b32 exec_lo, s96")
        A("s_mov_b32 exec_hi, 0")

    def live_only(fn):
        lab = A.newlabel("L_lo")
        A(f"s_cbranch_execz {lab}")
        fn()
        A.label(lab)

    def lds_wait_ge(addr_v, tmp_v, val, sleep=1):
        lab = A.newlabel("L_lw")
        done = A.newlabel("L_lwd")
        A(f"s_mov_b32 s60, {SPIN_MAX}")
        A.label(lab)
        A(f"ds_read_b32 v{tmp_v}, v{addr_v}")
        A("s_waitcnt lgkmcnt(0)")
        A(f"v_readfirstlane_b32 s61, v{tmp_v}")
        A(f"s_cbranch_execz {done}")
        A(f"s_cmp_ge_u32 s61, {val}")
        A(f"s_cbranch_scc1 {done}")
        if sleep:
            A(f"s_sleep {sleep}")
        A("s_sub_u32 s60, s60, 1")
        A("s_cmp_lg_u32 s60, 0")
        A(f"s_cbranch_scc1 {lab}")
        A.label(done)

    def lds_inc(addr, va, vb):
        A(f"v_mov_b32 v{va}, 1")
        A(f"v_mov_b32 v{vb}, {addr}")
        ex_c(1)
        A(f"ds_add_u32 v{vb}, v{va}")
        ex_all()

    def dump_stamps(nslots):
        if not instr:
            return
        A("s_waitcnt lgkmcnt(0)")
        A("s_mul_i32 s60, s2, 12")
        A("s_add_u32 s60, s60, s6")
        A("s_lshl_b32 s60, s60, 7")
        A(f"s_add_u32 s60, s60, {TS}")
        A("s_mov_b64 exec, 1")
        A("v_mov_b32 v1, 0")
        for i in range(nslots):
            A(f"v_mov_b32 v2, s{66 + 2 * i}")
            A(f"v_mov_b32 v3, s{67 + 2 * i}")
            A(f"buffer_store_dwordx2 v[2:3], v1, s[48:51], s60 offen offset:{8 * i}")
            A("s_nop 1")

    def tag4(r, TG):
        for i in range(4):
            A(f"v_bfi_b32 v{r + i}, s64, v{r + i}, v{TG + i}")

    A.label(NAME)
    stamp(0)
    A("s_cmp_ge_u32 s2, 256")
    A("s_cbranch_scc1 L_end")
    if remap:
        A("s_and_b32 s3, s2, 7")
        A("s_lshl_b32 s3, s3, 1")
        A("s_lshr_b32 s4, s2, 7")
        A("s_add_u32 s92, s3, s4")
        A("s_lshr_b32 s3, s92, 3")
    else:
        A("s_lshr_b32 s3, s2, 7")
    A("s_mul_i32 s4, s3, 40")
    A("s_add_u32 s4, s0, s4")
    A("s_addc_u32 s5, s1, 0")
    A("s_load_dwordx8 s[8:15], s[4:5], 0")
    A("s_load_dwordx2 s[16:17], s[4:5], 32")
    A("s_load_dwordx4 s[20:23], s[0:1], 80")
    A("s_load_dwordx2 s[24:25], s[0:1], 96")
    if remap:
        A("s_bfe_u32 s4, s2, 0x40003")
        A("s_and_b32 s5, s92, 7")
        A("s_lshl_b32 s92, s92, 4")
        A("s_add_u32 s92, s92, s4")
        A("s_lshr_b32 s93, s4, 1")
        A("s_lshl_b32 s93, s93, 3")
        A("s_add_u32 s93, s93, s5")
        A("s_lshl_b32 s93, s93, 1")
        A("s_and_b32 s4, s4, 1")
        A("s_add_u32 s93, s93, s4")
        A("s_lshl_b32 s4, s3, 7")
        A("s_add_u32 s93, s93, s4")
    else:
        A("s_mov_b32 s92, s2")
        A("s_mov_b32 s93, s2")
    A("v_lshrrev_b32 v1, 6, v0")
    A("v_mov_b32 v2, 0")
    A("v_readfirstlane_b32 s6, v1")
    A("v_and_b32 v1, 63, v0")
    A("s_and_b32 s26, s92, 127")
    A("s_and_b32 s94, s93, 127")
    A("v_lshrrev_b32 v4, 4, v1")
    A("s_mov_b64 s[96:97], -1")
    A("s_cmp_lt_u32 s6, 4")
    A("s_cbranch_scc0 L_att")

    W, XF, HT, HACC = 8, 40, 44, 76
    TG = 108
    PO = 144
    A("v_mov_b32 v8, 0")
    A("v_mov_b32 v9, 0")
    A("v_mov_b32 v10, 0")
    A("v_mov_b32 v11, 0")
    A("s_cmp_lg_u32 s6, 0")
    A("s_cbranch_scc1 L_noinit")
    A("ds_write_b128 v2, v[8:11]")
    A("ds_write_b128 v2, v[8:11] offset:16")
    A("ds_write_b128 v2, v[8:11] offset:48")
    A.label("L_noinit")
    A("s_lshr_b32 s27, s26, 2")
    A("s_and_b32 s52, s26, 3")
    A("v_and_b32 v5, 15, v1")
    A("v_and_b32 v2, 7, v1")
    A("v_lshlrev_b32 v2, 10, v2")
    A("v_lshl_add_u32 v2, v4, 4, v2")
    A("s_lshl_b32 s53, s52, 7")
    A("s_lshl_b32 s54, s6, 5")
    A("s_add_u32 s53, s53, s54")
    A("s_lshl_b32 s54, s53, 1")
    A("v_lshlrev_b32 v3, 16, v4")
    A("v_lshl_add_u32 v3, v5, 4, v3")
    A("s_lshl_b32 s56, s53, 13")
    A("s_lshl_b32 s55, s27, 8")
    A("s_add_u32 s56, s56, s55")
    A("s_waitcnt lgkmcnt(0)")
    srd(32, 14, 4194304)
    srd(28, 8, 8192)
    for e in range(8):
        A(f"buffer_load_dwordx4 v[{W + 4 * e}:{W + 4 * e + 3}], v3, s[32:35], s56 offen {ldflag}")
        if e < 7:
            A("s_add_u32 s56, s56, 8192")
    A(f"buffer_load_dwordx4 v[{XF}:{XF + 3}], v2, s[28:31], s54 offen")
    A("s_barrier")
    A("s_branch L_helper")

    A.label("L_att")
    KR, VR, QF, SR = 8, 72, 136, 152
    ACC, VT, PP = 8, 40, 136
    A("s_sub_u32 s7, s6, 4")
    A("s_lshr_b32 s36, s94, 1")
    A("s_lshl_b32 s36, s36, 20")
    A("s_and_b32 s37, s94, 1")
    A("s_lshl_b32 s37, s37, 17")
    A("s_add_u32 s36, s36, s37")
    A("s_lshl_b32 s37, s7, 14")
    A("s_add_u32 s36, s36, s37")
    A("s_add_u32 s36, s36, 786432")
    A("s_add_u32 s37, s36, 4096")
    A("s_add_u32 s38, s36, 8192")
    A("s_add_u32 s39, s36, 12288")
    A("v_and_b32 v2, 3, v1")
    A("v_lshlrev_b32 v2, 10, v2")
    A("v_bfe_u32 v3, v1, 2, 2")
    A("v_lshl_add_u32 v2, v3, 8, v2")
    A("v_lshl_add_u32 v2, v4, 4, v2")
    A("v_lshlrev_b32 v3, 4, v1")
    A("s_waitcnt lgkmcnt(0)")
    srd(28, 10, 67108864)
    srd(32, 12, 67108864)
    for T in range(4):
        for kk in range(4):
            if T * 4 + kk == pre_k:
                A("s_barrier")
            r = KR + (T * 4 + kk) * 4
            A(f"buffer_load_dwordx4 v[{r}:{r + 3}], v2, s[28:31], s{36 + T} offen offset:{kk * 64} {ldflag}")
    for i in range(16):
        r = VR + i * 4
        A(f"buffer_load_dwordx4 v[{r}:{r + 3}], v3, s[32:35], s{36 + i // 4} offen offset:{(i % 4) * 1024} {ldflag}")
    stamp(1)
    lds_inc(L_C4, 5, 6)
    srd(48, 24, WS_BYTES)
    A("s_mov_b32 s64, 0xfffffc00")
    A("v_and_b32 v7, 3, v1")
    A("v_lshlrev_b32 v7, 8, v7")
    A("v_lshl_add_u32 v7, v4, 4, v7")
    A(f"v_mov_b32 v6, {L_C3}")
    lds_wait_ge(6, 5, 4, sleep=2)
    stamp(2)
    A("s_setprio 1")
    for kk in range(4):
        A(f"ds_read_b128 v[{QF + 4 * kk}:{QF + 4 * kk + 3}], v7 offset:{L_QL + kk * 64}")
    A(f"s_mov_b32 s40, {C_SCALE}")
    A("s_mov_b32 s41, 0x05040100")
    A("s_mov_b32 s42, 0x07060302")
    A("s_waitcnt lgkmcnt(0)")
    for T in range(4):
        A(f"s_waitcnt vmcnt({28 - 4 * T})")
        for kk in range(4):
            r = KR + (T * 4 + kk) * 4
            c = "0" if kk == 0 else f"v[{SR + 4 * T}:{SR + 4 * T + 3}]"
            A(f"v_mfma_f32_16x16x32_bf16 v[{SR + 4 * T}:{SR + 4 * T + 3}], v[{r}:{r + 3}], v[{QF + 4 * kk}:{QF + 4 * kk + 3}], {c}")
    stamp(3)
    A("v_and_b32 v5, 3, v1")
    A("v_mul_u32_u24 v5, 528, v5")
    A("v_lshl_add_u32 v5, v4, 7, v5")
    A(f"s_mul_i32 s43, s7, {AP_A}")
    A(f"s_add_u32 s43, s43, {L_AP}")
    A("v_add_u32 v5, s43, v5")
    A("s_nop 3")
    A(f"v_max3_f32 v2, v{SR}, v{SR + 1}, v{SR + 2}")
    for i in range(3, 15, 2):
        A(f"v_max3_f32 v2, v2, v{SR + i}, v{SR + i + 1}")
    A(f"v_max_f32 v2, v2, v{SR + 15}")
    A("v_mov_b32 v3, v2")
    A("s_nop 1")
    A("v_permlane32_swap_b32 v2, v3")
    A("s_nop 1")
    A("v_max_f32 v2, v2, v3")
    A("v_mov_b32 v3, v2")
    A("s_nop 1")
    A("v_permlane16_swap_b32 v2, v3")
    A("s_nop 1")
    A("v_max_f32 v2, v2, v3")
    A("v_mul_f32 v2, s40, v2")
    for i in range(16):
        A(f"v_fma_f32 v{SR + i}, v{SR + i}, s40, -v2")
    for i in range(16):
        A(f"v_exp_f32 v{SR + i}, v{SR + i}")
    A("s_nop 0")
    for u in range(8):
        A(f"v_cvt_pk_bf16_f32 v{PP + u}, v{SR + 2 * u}, v{SR + 2 * u + 1}")
    A(f"v_add_f32 v3, v{SR}, v{SR + 1}")
    A(f"v_add_f32 v6, v{SR + 2}, v{SR + 3}")
    for i in range(4, 16, 2):
        A(f"v_add_f32 v3, v3, v{SR + i}")
        A(f"v_add_f32 v6, v6, v{SR + i + 1}")
    A("v_add_f32 v3, v3, v6")
    A("v_mov_b32 v6, v3")
    A("s_nop 1")
    A("v_permlane32_swap_b32 v3, v6")
    A("s_nop 1")
    A("v_add_f32 v3, v3, v6")
    A("v_mov_b32 v6, v3")
    A("s_nop 1")
    A("v_permlane16_swap_b32 v3, v6")
    A("s_nop 1")
    A("v_add_f32 v3, v3, v6")
    A("v_lshlrev_b32 v6, 5, v1")
    A("s_lshl_b32 s43, s7, 2")
    A(f"s_add_u32 s43, s43, {L_ST}")
    A("v_add_u32 v6, s43, v6")
    A("s_mov_b64 exec, 15")
    A("ds_write_b32 v6, v2")
    A("ds_write_b32 v6, v3 offset:128")
    A("s_mov_b64 exec, -1")
    ATG = 144
    A(f"v_mov_b32 v7, {L_TG}")
    A(f"ds_read_b128 v[{ATG}:{ATG + 3}], v7")
    A("s_and_b32 s43, s7, 3")
    A("s_lshl_b32 s56, s93, 11")
    A("s_lshl_b32 s55, s43, 9")
    A("s_add_u32 s56, s56, s55")
    A(f"s_add_u32 s56, s56, {OB}")
    A("s_lshl_b32 s57, s93, 6")
    A("s_lshl_b32 s55, s43, 4")
    A("s_add_u32 s57, s57, s55")
    A(f"s_add_u32 s57, s57, {OW}")
    A("v_and_b32 v2, 31, v1")
    A("v_lshlrev_b32 v2, 4, v2")
    A("s_mul_i32 s54, s43, 528")
    A(f"s_add_u32 s55, s54, {L_AP}")
    A("v_add_u32 v3, s55, v2")
    A(f"s_add_u32 s55, s54, {L_OL}")
    A("v_add_u32 v150, s55, v2")
    A("s_lshl_b32 s54, s43, 2")
    A(f"s_add_u32 s54, s54, {L_F6}")
    A("v_mov_b32 v151, s54")
    A("s_lshl_b32 s54, s43, 5")
    A(f"s_add_u32 s54, s54, {L_ST}")
    A("v_mov_b32 v6, s54")
    A(f"v_mov_b32 v7, {L_C5}")
    A("v_mov_b32 v148, 1")
    for G in range(2):
        for u in range(4):
            A(f"s_waitcnt vmcnt({15 - (8 * G + 2 * u + 1)})")
            r0 = VR + (8 * G + 2 * u) * 4
            r1 = r0 + 4
            for t in range(8):
                sel = "s41" if (t & 1) == 0 else "s42"
                A(f"v_perm_b32 v{VT + 4 * t + u}, v{r1 + (t >> 1)}, v{r0 + (t >> 1)}, {sel}")
        A("s_nop 1")
        for t in range(8):
            c = "0" if G == 0 else f"v[{ACC + 4 * t}:{ACC + 4 * t + 3}]"
            A(f"v_mfma_f32_16x16x32_bf16 v[{ACC + 4 * t}:{ACC + 4 * t + 3}], v[{VT + 4 * t}:{VT + 4 * t + 3}], v[{PP + 4 * G}:{PP + 4 * G + 3}], {c}")
    stamp(4)
    A("s_mov_b32 exec_lo, 0x000f000f")
    A("s_mov_b32 exec_hi, 0x000f000f")
    A("s_nop 0")
    for t in range(8):
        if t == 7:
            A("s_nop 0")
        A(f"ds_write_b128 v5, v[{ACC + 4 * t}:{ACC + 4 * t + 3}] offset:{16 * t}")
    A("s_mov_b64 exec, 1")
    A("s_waitcnt lgkmcnt(0)")
    A("ds_add_u32 v7, v148")
    A("s_setprio 0")
    A("s_cmp_lt_u32 s7, 4")
    if dry & 1:
        A("s_cselect_b64 s[96:97], 0, -1")
    else:
        A("s_cbranch_scc1 L_aend")
    ex_all()
    lds_wait_ge(7, 149, 8, sleep=0)
    A("s_setprio 1")
    stamp(5)
    CB, OA = 72, 8
    A(f"ds_read_b128 v[{CB}:{CB + 3}], v6")
    A(f"ds_read_b128 v[{CB + 4}:{CB + 7}], v6 offset:16")
    A(f"ds_read_b128 v[{CB + 8}:{CB + 11}], v6 offset:128")
    A(f"ds_read_b128 v[{CB + 12}:{CB + 15}], v6 offset:144")
    for a in range(8):
        A(f"ds_read_b128 v[{OA + 4 * a}:{OA + 4 * a + 3}], v3 offset:{a * AP_A}")
    A("s_waitcnt lgkmcnt(10)" if not instr else "s_waitcnt lgkmcnt(0)")
    A(f"v_max3_f32 v90, v{CB}, v{CB + 1}, v{CB + 2}")
    A(f"v_max3_f32 v90, v90, v{CB + 3}, v{CB + 4}")
    A(f"v_max3_f32 v90, v90, v{CB + 5}, v{CB + 6}")
    A(f"v_max_f32 v90, v90, v{CB + 7}")
    for a in range(8):
        A(f"v_sub_f32 v{CB + a}, v{CB + a}, v90")
    for a in range(8):
        A(f"v_exp_f32 v{CB + a}, v{CB + a}")
    A("s_waitcnt lgkmcnt(8)" if not instr else "s_waitcnt lgkmcnt(0)")
    A(f"v_mul_f32 v91, v{CB}, v{CB + 8}")
    for a in range(1, 8):
        A(f"v_fmac_f32 v91, v{CB + a}, v{CB + 8 + a}")
    A("v_rcp_f32 v92, v91")
    A("v_log_f32 v93, v91")
    A("s_waitcnt lgkmcnt(0)")
    for i in range(4):
        A(f"v_mul_f32 v{96 + i}, v{CB}, v{OA + i}")
    for a in range(1, 8):
        for i in range(4):
            A(f"v_fmac_f32 v{96 + i}, v{CB + a}, v{OA + 4 * a + i}")
    A("v_add_f32 v93, v93, v90")
    for i in range(4):
        A(f"v_mul_f32 v{96 + i}, v92, v{96 + i}")
    tag4(96, ATG)
    A("s_mov_b32 exec_hi, 0")
    live_only(lambda: A("buffer_store_dwordx4 v[96:99], v2, s[48:51], s56 offen"))
    A("v_and_b32 v94, s64, v93")
    A("v_sub_f32 v94, v93, v94")
    A(f"v_bfi_b32 v100, s64, v93, v{ATG}")
    A(f"v_bfi_b32 v101, s64, v94, v{ATG + 1}")
    A(f"v_bfi_b32 v102, s64, v93, v{ATG + 2}")
    A(f"v_bfi_b32 v103, s64, v93, v{ATG + 3}")
    A("ds_write_b128 v150, v[96:99]")
    ex_c(1)
    live_only(lambda: A("buffer_store_dwordx4 v[100:103], v2, s[48:51], s57 offen"))
    stamp(6)
    A("ds_write_b128 v150, v[100:103] offset:512")
    A("s_waitcnt lgkmcnt(0)")
    A("ds_write_b32 v151, v148")
    A.label("L_aend")
    dump_stamps(7)
    A("s_endpgm")

    A.label("L_helper")
    srd(36, 16, 4194304)
    srd(44, 20, 16384)
    srd(40, 22, 256)
    srd(48, 24, WS_BYTES)
    A(f"s_mov_b32 s65, {EP}")
    A("s_mov_b32 s64, 0xfffffc00")
    A("v_lshlrev_b32 v6, 4, v1")
    A("s_mov_b32 s58, 0x05040100")
    A("s_mov_b32 s59, 0x07060302")
    A("s_mov_b32 s98, 0")
    A("s_mov_b32 s99, 0")
    A("s_cmp_lg_u32 s6, 0")
    A("s_cbranch_scc1 L_noepoch")
    A("s_load_dwordx2 s[62:63], s[24:25], s65")
    A("s_waitcnt lgkmcnt(0)")
    A("s_add_u32 s62, s62, 1")
    A("s_addc_u32 s63, s63, 0")
    A("s_and_b32 s54, s62, 0x3ff")
    A(f"v_mov_b32 v{TG}, s54")
    A("s_lshr_b32 s54, s62, 10")
    A("s_add_u32 s54, s54, s62")
    A("s_and_b32 s54, s54, 0x3ff")
    A(f"v_mov_b32 v{TG + 1}, s54")
    A("s_lshr_b32 s54, s62, 20")
    A("s_add_u32 s54, s54, s62")
    A("s_and_b32 s54, s54, 0x3ff")
    A(f"v_mov_b32 v{TG + 2}, s54")
    A("s_lshr_b64 s[54:55], s[62:63], 30")
    A("s_add_u32 s54, s54, s62")
    A("s_and_b32 s54, s54, 0x3ff")
    A(f"v_mov_b32 v{TG + 3}, s54")
    A(f"v_mov_b32 v113, {L_TG}")
    A("s_mov_b64 exec, 1")
    A(f"ds_write_b128 v113, v[{TG}:{TG + 3}]")
    A("s_mov_b64 exec, -1")
    A.label("L_noepoch")

    def transpose(first_wait):
        for u in range(4):
            A(f"s_waitcnt vmcnt({first_wait - (2 * u + 1)})")
            r0 = W + 8 * u
            r1 = r0 + 4
            for t in range(8):
                sel = "s58" if (t & 1) == 0 else "s59"
                A(f"v_perm_b32 v{HT + 4 * t + u}, v{r1 + (t >> 1)}, v{r0 + (t >> 1)}, {sel}")

    def do_mfma(bop):
        for t in range(8):
            A(f"v_mfma_f32_16x16x32_bf16 v[{HACC + 4 * t}:{HACC + 4 * t + 3}], v[{HT + 4 * t}:{HT + 4 * t + 3}], v[{bop}:{bop + 3}], 0")

    def check(regs4, tmp):
        n = 0
        for r in regs4:
            for i in range(4):
                A(f"v_xor_b32 v{tmp + n}, v{r + i}, v{TG + i}")
                n += 1
        live = list(range(tmp, tmp + n))
        while len(live) > 1:
            nxt = []
            while len(live) >= 3:
                a, b, c = live[:3]
                live = live[3:]
                A(f"v_or3_b32 v{a}, v{a}, v{b}, v{c}")
                nxt.append(a)
            if len(live) == 2 and not nxt:
                A(f"v_or_b32 v{live[0]}, v{live[0]}, v{live[1]}")
                nxt.append(live[0])
                live = []
            live = nxt + live
        A(f"v_and_b32 v{live[0]}, 0x3ff, v{live[0]}")
        A(f"v_cmp_ne_u32 vcc, 0, v{live[0]}")

    def pub_q_global(name):
        A(f"s_cbranch_execz L_pq_{name}")
        A("s_cmp_lg_u32 s98, 0")
        A(f"s_cbranch_scc1 L_pq_{name}")
        A("s_mov_b64 s[30:31], exec")
        A("s_mov_b64 exec, -1")
        A(f"s_add_u32 s95, s95, {GOFF}")
        A("buffer_store_dwordx4 v[116:119], v0, s[48:51], s95 offen sc1")
        A("s_mov_b32 s98, 1")
        A("s_mov_b64 exec, s[30:31]")
        A.label(f"L_pq_{name}")

    def pub_o_global(name, wait):
        A(f"s_cbranch_execz L_po_{name}")
        A("s_cmp_lg_u32 s99, 0")
        A(f"s_cbranch_scc1 L_po_{name}")
        A("s_mov_b64 s[30:31], exec")
        A("s_mov_b64 exec, -1")
        A("s_lshl_b32 s32, s6, 2")
        A(f"s_add_u32 s32, s32, {L_F6}")
        A("v_mov_b32 v137, s32")
        if wait:
            lds_wait_ge(137, 138, 1, sleep=1)
        else:
            A("ds_read_b32 v138, v137")
            A("s_waitcnt lgkmcnt(0)")
            A("v_readfirstlane_b32 s32, v138")
            A("s_cmp_eq_u32 s32, 0")
            A(f"s_cbranch_scc1 L_por_{name}")
        A("s_mul_i32 s32, s6, 528")
        A(f"s_add_u32 s32, s32, {L_OL}")
        A("v_lshlrev_b32 v137, 4, v3")
        A("v_add_u32 v138, s32, v137")
        A("v_mov_b32 v139, s32")
        A("ds_read_b128 v[140:143], v138")
        A("ds_read_b128 v[164:167], v139 offset:512")
        A("s_lshl_b32 s32, s93, 11")
        A("s_lshl_b32 s33, s6, 9")
        A("s_add_u32 s32, s32, s33")
        A(f"s_add_u32 s32, s32, {OB + GOFF}")
        A("s_lshl_b32 s34, s93, 6")
        A("s_lshl_b32 s33, s6, 4")
        A("s_add_u32 s34, s34, s33")
        A(f"s_add_u32 s34, s34, {OW + GOFF}")
        A("s_waitcnt lgkmcnt(0)")
        A("s_mov_b32 exec_hi, 0")
        A("buffer_store_dwordx4 v[140:143], v137, s[48:51], s32 offen sc1")
        A("s_mov_b64 exec, 1")
        A("buffer_store_dwordx4 v[164:167], v137, s[48:51], s34 offen sc1")
        A("s_mov_b32 s99, 1")
        A.label(f"L_por_{name}")
        A("s_mov_b64 exec, s[30:31]")
        A.label(f"L_po_{name}")

    def toggle(name, alt):
        if not alt:
            return
        A(f"s_cmp_gt_u32 s60, {SPIN_MAX - N_LOCAL}")
        A(f"s_cbranch_scc1 L_tg_{name}")
        for r in alt:
            A(f"s_xor_b32 s{r}, s{r}, {GOFF}")
        if name[0] == "q":
            pub_q_global(name)
        else:
            pub_o_global(name, False)
        A.label(f"L_tg_{name}")

    def poll2(name, loads, nl, regs4, tmp, thr, sleep, depth, alt=()):
        A(f"s_mov_b32 s60, {SPIN_MAX}")
        A.label(f"L_pa_{name}")
        live_only(lambda: (loads(), A("s_waitcnt vmcnt(0)")))
        check(regs4, tmp)
        if thr:
            A(f"s_cbranch_execz L_pbs_{name}")
        A(f"s_cbranch_vccz L_pok_{name}")
        A("s_mov_b64 exec, vcc")
        if thr:
            A("s_bcnt1_i32_b64 s61, vcc")
            A(f"s_cmp_le_u32 s61, {thr}")
            A(f"s_cbranch_scc1 L_pbs_{name}")
        if sleep:
            A(f"s_sleep {sleep}")
        toggle(name + "a", alt)
        A("s_sub_u32 s60, s60, 1")
        A("s_cmp_lg_u32 s60, 0")
        A(f"s_cbranch_scc1 L_pa_{name}")
        if thr:
            A(f"s_branch L_pok_{name}")
            A.label(f"L_pbs_{name}")
            A(f"s_cbranch_execz L_pbc_{name}")
            for d in range(depth):
                loads()
            A.label(f"L_pb_{name}")
            A(f"s_waitcnt vmcnt({nl * (depth - 1)})")
            if alt and depth > 1:
                A(f"s_cmp_gt_u32 s60, {SPIN_MAX - N_LOCAL}")
                A(f"s_cbranch_scc1 L_pbn_{name}")
                A("s_waitcnt vmcnt(0)")
                A.label(f"L_pbn_{name}")
            A.label(f"L_pbc_{name}")
            check(regs4, tmp)
            A(f"s_cbranch_vccz L_pok_{name}")
            A("s_mov_b64 exec, vcc")
            toggle(name + "b", alt)
            loads()
            A("s_sub_u32 s60, s60, 1")
            A("s_cmp_lg_u32 s60, 0")
            A(f"s_cbranch_scc1 L_pb_{name}")
        A.label(f"L_pok_{name}")
        ex_all()

    transpose(8)
    stamp(1)
    A("v_mul_u32_u24 v7, 528, v5")
    A("v_lshl_add_u32 v7, v4, 7, v7")
    A(f"s_mul_i32 s54, s6, {QR_W}")
    A(f"s_add_u32 s54, s54, {L_QR}")
    A("v_add_u32 v7, s54, v7")
    A("s_waitcnt vmcnt(0)")
    do_mfma(XF)
    A("v_lshrrev_b32 v2, 5, v1")
    A("s_lshl_b32 s54, s6, 1")
    A("v_add_u32 v2, s54, v2")
    A("v_and_b32 v3, 31, v1")
    A("v_mul_u32_u24 v112, 528, v2")
    A("v_lshl_add_u32 v112, v3, 4, v112")
    A(f"v_add_u32 v112, {L_QR}, v112")

    def reduce_helpers(cnt, dst, tags=False):
        A(f"v_mov_b32 v132, {cnt}")
        A("v_mov_b32 v133, 1")
        ex_pat(0x00ff00ff)
        for t in range(8):
            A(f"ds_write_b128 v7, v[{HACC + 4 * t}:{HACC + 4 * t + 3}] offset:{16 * t}")
        ex_c(1)
        A("s_waitcnt lgkmcnt(0)")
        A("ds_add_u32 v132, v133")
        ex_all()
        lds_wait_ge(132, 133, 4, sleep=0)
        if tags:
            A(f"v_mov_b32 v132, {L_TG}")
            A(f"ds_read_b128 v[{TG}:{TG + 3}], v132")
        for w in range(4):
            A(f"ds_read_b128 v[{dst + 4 * w}:{dst + 3 + 4 * w}], v112 offset:{w * QR_W}")
        A("s_waitcnt lgkmcnt(0)")
        for i in range(4):
            A(f"v_add_f32 v{dst + i}, v{dst + i}, v{dst + 4 + i}")
            A(f"v_add_f32 v{dst + 8 + i}, v{dst + 8 + i}, v{dst + 12 + i}")
        for i in range(4):
            A(f"v_add_f32 v{dst + i}, v{dst + i}, v{dst + 8 + i}")

    reduce_helpers(L_C1, 116, tags=True)
    tag4(116, TG)
    A("v_lshlrev_b32 v0, 16, v2")
    A("v_lshl_add_u32 v0, v3, 4, v0")
    A("s_lshl_b32 s95, s3, 19")
    A("s_lshl_b32 s55, s27, 11")
    A("s_add_u32 s95, s95, s55")
    A("s_lshl_b32 s55, s52, 9")
    A("s_add_u32 s95, s95, s55")
    A("buffer_store_dwordx4 v[116:119], v0, s[48:51], s95 offen")
    stamp(2)
    A("s_lshr_b32 s54, s94, 1")
    A("s_lshl_b32 s54, s54, 13")
    A("s_lshl_b32 s55, s3, 19")
    A("s_add_u32 s54, s54, s55")
    A("s_lshl_b32 s55, s6, 11")
    A("s_add_u32 s54, s54, s55")
    A("v_lshrrev_b32 v113, 5, v1")
    A("v_lshlrev_b32 v113, 10, v113")
    A("v_lshl_add_u32 v113, v3, 4, v113")
    A("v_lshrrev_b32 v114, 3, v3")
    A("v_lshlrev_b32 v114, 6, v114")
    A("v_and_b32 v115, 7, v3")
    A("v_lshl_add_u32 v114, v115, 1, v114")
    A("s_lshl_b32 s55, s6, 8")
    A(f"s_add_u32 s55, s55, {L_QL}")
    A("v_add_u32 v114, s55, v114")

    def qloads():
        A("buffer_load_dwordx4 v[120:123], v113, s[48:51], s54 offen sc1")
        A("buffer_load_dwordx4 v[124:127], v113, s[48:51], s54 offen offset:512 sc1")
    poll2("q", qloads, 2, [120, 124], 128, 0, q_sleep, 1, alt=(54,))
    stamp(3)
    for i in range(4):
        A(f"v_add_f32 v{120 + i}, v{120 + i}, v{124 + i}")
    for i in range(4):
        A(f"v_mov_b32 v{124 + i}, v{120 + i}")
    A("s_nop 1")
    for i in range(4):
        A(f"v_permlane32_swap_b32 v{120 + i}, v{124 + i}")
    A("s_nop 1")
    for i in range(4):
        A(f"v_add_f32 v{120 + i}, v{120 + i}, v{124 + i}")
    A("v_cvt_pk_bf16_f32 v120, v120, v121")
    A("v_cvt_pk_bf16_f32 v122, v122, v123")
    A("s_mov_b32 exec_hi, 0")
    A("ds_write_b16 v114, v120")
    A("ds_write_b16_d16_hi v114, v120 offset:16")
    A("ds_write_b16 v114, v122 offset:32")
    A("ds_write_b16_d16_hi v114, v122 offset:48")
    A("s_waitcnt lgkmcnt(0)")
    A("s_mov_b64 exec, -1")
    lds_inc(L_C3, 113, 114)
    stamp(4)
    A("v_lshlrev_b32 v115, 11, v4")
    A("v_lshl_add_u32 v115, v5, 4, v115")
    A("s_lshl_b32 s56, s27, 7")
    A("s_lshl_b32 s55, s6, 5")
    A("s_add_u32 s56, s56, s55")
    A("s_lshl_b32 s56, s56, 10")
    A("s_lshl_b32 s55, s52, 8")
    A("s_add_u32 s56, s56, s55")
    A("v_and_b32 v113, 7, v1")
    A("v_lshlrev_b32 v113, 4, v113")
    A("v_bfe_u32 v114, v1, 3, 1")
    A("v_add_u32 v113, v113, v114")
    A("s_lshr_b32 s54, s27, 2")
    A("s_lshl_b32 s54, s54, 1")
    A("s_lshl_b32 s55, s3, 7")
    A("s_add_u32 s54, s54, s55")
    A("v_add_u32 v113, s54, v113")
    A("v_lshlrev_b32 v114, 6, v113")
    A("v_lshlrev_b32 v113, 11, v113")
    A("v_lshl_add_u32 v113, v4, 5, v113")
    A("s_and_b32 s55, s27, 3")
    A("s_lshl_b32 s54, s55, 9")
    A("s_lshl_b32 s53, s6, 7")
    A("s_add_u32 s54, s54, s53")
    A(f"s_add_u32 s54, s54, {OB}")
    A("s_lshl_b32 s55, s55, 4")
    A(f"s_add_u32 s55, s55, {OW}")
    A("v_lshlrev_b32 v134, 2, v2")
    A("v_lshrrev_b32 v135, 3, v3")
    A("v_add_u32 v134, v134, v135")
    A("v_lshlrev_b32 v134, 12, v134")
    A("v_and_b32 v135, 7, v3")
    A("v_lshl_add_u32 v134, v135, 4, v134")
    A("s_lshl_b32 s53, s3, 19")
    A("s_lshl_b32 s57, s52, 17")
    A("s_add_u32 s53, s53, s57")
    A("s_lshl_b32 s57, s27, 7")
    A("s_add_u32 s53, s53, s57")
    A(f"s_add_u32 s53, s53, {PB}")
    A("s_xor_b32 s100, s92, 128")
    A("s_lshl_b32 s100, s100, 12")
    A(f"s_add_u32 s100, s100, {PB}")
    A("s_bfe_u32 s101, s26, 0x30002")
    A("s_lshl_b32 s101, s101, 11")
    A("s_xor_b32 s57, s3, 1")
    A("s_lshl_b32 s57, s57, 10")
    A("s_add_u32 s101, s101, s57")
    A("s_lshr_b32 s57, s26, 5")
    A("s_lshl_b32 s57, s57, 8")
    A("s_add_u32 s101, s101, s57")
    A("s_and_b32 s57, s26, 3")
    A("s_lshl_b32 s57, s57, 6")
    A("s_add_u32 s101, s101, s57")
    A("v_lshlrev_b32 v135, 1, v1")
    A("v_bfe_u32 v136, v1, 3, 2")
    A("v_cmp_eq_u32 s[8:9], 1, v136")
    A("v_cmp_eq_u32 s[10:11], 2, v136")
    A("v_cmp_eq_u32 s[12:13], 3, v136")
    A("s_cmp_lg_u32 s6, 3")
    A("s_cbranch_scc1 L_noarr")
    A("v_mov_b32 v132, 0")
    A("v_mov_b32 v133, 1")
    A("s_mov_b64 exec, 1")
    A("buffer_atomic_add v133, v132, s[40:43], 0 offen")
    A("s_mov_b64 exec, -1")
    A("s_branch L_tail")
    A.label("L_noarr")
    if dry & 2:
        A("s_mov_b64 s[96:97], 0")
        A("s_mov_b64 exec, 0")
    A.label("L_tail")
    A(f"v_mov_b32 v132, {L_C4}")
    lds_wait_ge(132, 133, 8, sleep=2)
    stamp(5)
    pub_q_global("c4")
    if wo_c5:
        A(f"v_mov_b32 v132, {L_C5}")
        lds_wait_ge(132, 133, wo_c5, sleep=1)
    stamp(6)
    def wo_loads():
        for e in range(8):
            A(f"s_add_u32 s57, s56, {8 * (e & 3) * 1024}")
            A(f"buffer_load_dwordx4 v[{W + 4 * e}:{W + 4 * e + 3}], v115, s[36:39], s57 offen offset:{(e >> 2) * 1024} {ldflag}")
    live_only(wo_loads)
    transpose(7)
    stamp(8)

    def oloads():
        A(f"buffer_load_dwordx4 v[{PO}:{PO + 3}], v113, s[48:51], s54 offen sc1")
        A(f"buffer_load_dwordx4 v[{PO + 4}:{PO + 7}], v113, s[48:51], s54 offen offset:16 sc1")
        A(f"buffer_load_dwordx4 v[{PO + 8}:{PO + 11}], v114, s[48:51], s55 offen sc1")
    poll2("o", oloads, 3, [PO, PO + 4, PO + 8], 116, o_thr, o_sleep, o_depth, alt=(54, 55))
    stamp(9)
    A(f"v_and_b32 v128, s64, v{PO + 8}")
    A(f"v_add_f32 v128, v128, v{PO + 9}")
    A("s_nop 1")
    A("v_mov_b32_dpp v129, v128 row_ror:8 row_mask:0xf bank_mask:0xf")
    A("v_sub_f32 v129, v129, v128")
    A("v_exp_f32 v129, v129")
    A("s_nop 0")
    A("v_add_f32 v129, 1.0, v129")
    A("v_rcp_f32 v129, v129")
    A("s_nop 0")
    for i in range(8):
        A(f"v_mul_f32 v{116 + i}, v129, v{PO + i}")
    for i in range(8):
        A(f"v_add_f32_dpp v{156 + i}, v{116 + i}, v{116 + i} row_ror:8 row_mask:0xf bank_mask:0xf")
    for u in range(4):
        A(f"v_cvt_pk_bf16_f32 v{XF + u}, v{156 + 2 * u}, v{156 + 2 * u + 1}")
    A("s_nop 1")
    do_mfma(XF)
    A("s_nop 3")
    reduce_helpers(L_C2, 116)
    tag4(116, TG)
    live_only(lambda: A("buffer_store_dwordx4 v[116:119], v134, s[48:51], s53 offen sc1"))
    stamp(10)
    A("s_cmp_eq_u32 s6, 0")
    A("s_cbranch_scc1 L_final")
    pub_o_global("end", True)
    A("s_cbranch_execz L_hend")
    A("s_cmp_lg_u32 s6, 1")
    A("s_cbranch_scc1 L_hend")
    A("s_cmp_lg_u32 s2, 0")
    A("s_cbranch_scc1 L_hend")
    A("s_load_dwordx2 s[62:63], s[24:25], s65")
    A("s_waitcnt lgkmcnt(0)")
    A("s_add_u32 s62, s62, 1")
    A("s_addc_u32 s63, s63, 0")
    A("v_mov_b32 v60, 0")
    A("s_mov_b64 exec, 1")
    A(f"s_mov_b32 s60, {SPIN_MAX}")
    A.label("L_epw")
    A("buffer_load_dword v54, v60, s[40:43], 0 offen sc1")
    A("s_waitcnt vmcnt(0)")
    A("v_readfirstlane_b32 s61, v54")
    A("s_cmp_ge_u32 s61, 256")
    A("s_cbranch_scc1 L_epok")
    A("s_sub_u32 s60, s60, 1")
    A("s_cmp_lg_u32 s60, 0")
    A("s_cbranch_scc1 L_epw")
    A.label("L_epok")
    A("v_mov_b32 v52, s62")
    A("v_mov_b32 v53, s63")
    A("buffer_store_dwordx2 v[52:53], v60, s[48:51], s65 offen")
    A("s_branch L_hend")
    A.label("L_final")
    pub_o_global("end0", True)

    def ploads():
        for i in range(4):
            A(f"buffer_load_dwordx4 v[{8 + 4 * i}:{11 + 4 * i}], v6, s[48:51], s100 offen offset:{1024 * i} sc1")
    poll2("p", ploads, 4, [8, 12, 16, 20], 24, p_thr, p_sleep, p_depth)
    stamp(11)
    for i in range(4):
        A(f"v_add_f32 v{44 + i}, v{8 + i}, v{12 + i}")
        A(f"v_add_f32 v{48 + i}, v{16 + i}, v{20 + i}")
    for i in range(4):
        A(f"v_add_f32 v{44 + i}, v{44 + i}, v{48 + i}")
    A("s_nop 1")
    for i in range(4):
        A(f"v_add_f32_dpp v{48 + i}, v{44 + i}, v{44 + i} row_ror:8 row_mask:0xf bank_mask:0xf")
    for i in range(4):
        A(f"v_mov_b32 v{44 + i}, v{48 + i}")
    A("s_nop 1")
    for i in range(4):
        A(f"v_permlane16_swap_b32 v{44 + i}, v{48 + i}")
    A("s_nop 1")
    for i in range(4):
        A(f"v_add_f32 v{48 + i}, v{44 + i}, v{48 + i}")
    for i in range(4):
        A(f"v_mov_b32 v{44 + i}, v{48 + i}")
    A("s_nop 1")
    for i in range(4):
        A(f"v_permlane32_swap_b32 v{44 + i}, v{48 + i}")
    A("s_nop 1")
    for i in range(4):
        A(f"v_add_f32 v{48 + i}, v{44 + i}, v{48 + i}")
    A("v_cndmask_b32 v48, v48, v49, s[8:9]")
    A("v_cndmask_b32 v48, v48, v50, s[10:11]")
    A("v_cndmask_b32 v48, v48, v51, s[12:13]")
    A("v_cvt_pk_bf16_f32 v48, v48, v48")
    A("s_mov_b32 exec_hi, 0")
    live_only(lambda: A("buffer_store_short v48, v135, s[44:47], s101 offen"))
    stamp(12)
    A.label("L_hend")
    if dry & 2:
        A("s_cbranch_execnz L_hexit")
        A("s_mov_b64 s[96:97], -1")
        A("s_mov_b64 exec, -1")
        A("s_branch L_tail")
        A.label("L_hexit")
    dump_stamps(13)
    A.label("L_end")
    A("s_endpgm")

    out = [HEADER.rstrip("\n")]
    out.append(f"; @launch grid=(256,1,1) block=(768,1,1) lds={LDS_BYTES}")
    out.append('.amdgcn_target "amdgcn-amd-amdhsa--gfx950"')
    out.append(".text")
    out.append(f".globl {NAME}")
    out.append(".p2align 8")
    out.append(f".type {NAME},@function")
    out += A.L
    out.append('.section .rodata,"a"')
    out.append(".p2align 6")
    out.append(f".amdhsa_kernel {NAME}")
    out.append("  .amdhsa_next_free_vgpr 168")
    out.append("  .amdhsa_next_free_sgpr 102")
    out.append("  .amdhsa_accum_offset 168")
    out.append("  .amdhsa_group_segment_fixed_size 0")
    out.append("  .amdhsa_kernarg_size 104")
    out.append("  .amdhsa_user_sgpr_count 2")
    out.append("  .amdhsa_user_sgpr_kernarg_segment_ptr 1")
    out.append("  .amdhsa_system_sgpr_workgroup_id_x 1")
    out.append(".end_amdhsa_kernel")
    return "\n".join(out) + "\n"


if __name__ == "__main__":
    import argparse
    ap = argparse.ArgumentParser()
    ap.add_argument("-o", default="concat_heads__sliding_block_cached__sliding_block_cached__decode.s")
    ap.add_argument("--instr", action="store_true")
    ap.add_argument("--ldflag", default="nt")
    for nm, dv in (("q_sleep", 4), ("o_thr", 16), ("o_sleep", 1), ("o_depth", 3), ("p_thr", 16), ("p_sleep", 2),
                   ("p_depth", 3), ("remap", 1), ("pre_k", 4), ("wo_c5", 0), ("dry", 3)):
        ap.add_argument("--" + nm.replace("_", "-"), type=int, default=dv)
    a = ap.parse_args()
    kw = vars(a).copy()
    o = kw.pop("o")
    open(o, "w").write(gen(**kw))
```

```python
import sys, math, struct

NAME = "concat_heads__sliding_block_cached__sliding_block_cached__decode_kernel"

HEADER = """; Kernarg layout for this problem (104 bytes, ptrs only, base s[0:1]):
;
"""

def f32bits(x):
    return struct.unpack("<I", struct.pack("<f", x))[0]

C_SCALE = f32bits(math.log2(math.e) / math.sqrt(128.0))

QP = 0x000000
OB = 0x100000
OW = 0x180000
PB = 0x200000
EP = 0x300000
TS = 0x400000
WS_BYTES = 285229056
GOFF = 0x800000
N_LOCAL = 256

L_C1, L_C2, L_C3, L_C5, L_C4 = 0, 4, 8, 12, 16
L_TG = 32
L_F6 = 48
L_QL = 64
L_ST = 1088
L_QR = 1536
QR_W = 4224
L_AP = L_QR + 4 * QR_W
AP_A = 2112
L_OL = L_AP + 8 * AP_A
LDS_BYTES = L_OL + 4 * 528

SPIN_MAX = 1 << 20


class Asm:
    def __init__(self):
        self.L = []
        self.nlab = 0

    def __call__(self, s):
        self.L.append("    " + s)

    def label(self, s):
        self.L.append(s + ":")

    def newlabel(self, pfx="L"):
        self.nlab += 1
        return f"{pfx}_{self.nlab}"


def gen(instr=False, ldflag="nt", q_sleep=4, o_thr=16, o_sleep=1, o_depth=3, p_thr=16, p_sleep=2, p_depth=3,
        remap=1, pre_k=4, wo_c5=0, dry=3, tlb=1):
    A = Asm()

    def stamp(slot):
        if instr:
            A(f"s_memrealtime s[{66 + 2 * slot}:{67 + 2 * slot}]")

    def srd(d, lo, nbytes):
        A(f"s_mov_b32 s{d}, s{lo}")
        A(f"s_and_b32 s{d + 1}, s{lo + 1}, 0xffff")
        A(f"s_mov_b32 s{d + 2}, {nbytes}")
        A(f"s_mov_b32 s{d + 3}, 0x20000")

    def ex_all():
        A("s_mov_b64 exec, s[96:97]")

    def ex_c(c):
        A(f"s_and_b64 exec, s[96:97], {c}")

    def ex_pat(p):
        A(f"s_and_b32 exec_lo, s96, {p:#x}")
        A(f"s_and_b32 exec_hi, s97, {p:#x}")

    def ex_lo32():
        A("s_mov_b32 exec_lo, s96")
        A("s_mov_b32 exec_hi, 0")

    def live_only(fn):
        lab = A.newlabel("L_lo")
        A(f"s_cbranch_execz {lab}")
        fn()
        A.label(lab)

    def lds_wait_ge(addr_v, tmp_v, val, sleep=1):
        lab = A.newlabel("L_lw")
        done = A.newlabel("L_lwd")
        A(f"s_mov_b32 s60, {SPIN_MAX}")
        A.label(lab)
        A(f"ds_read_b32 v{tmp_v}, v{addr_v}")
        A("s_waitcnt lgkmcnt(0)")
        A(f"v_readfirstlane_b32 s61, v{tmp_v}")
        A(f"s_cbranch_execz {done}")
        A(f"s_cmp_ge_u32 s61, {val}")
        A(f"s_cbranch_scc1 {done}")
        if sleep:
            A(f"s_sleep {sleep}")
        A("s_sub_u32 s60, s60, 1")
        A("s_cmp_lg_u32 s60, 0")
        A(f"s_cbranch_scc1 {lab}")
        A.label(done)

    def lds_inc(addr, va, vb):
        A(f"v_mov_b32 v{va}, 1")
        A(f"v_mov_b32 v{vb}, {addr}")
        ex_c(1)
        A(f"ds_add_u32 v{vb}, v{va}")
        ex_all()

    def dump_stamps(nslots):
        if not instr:
            return
        A("s_waitcnt lgkmcnt(0)")
        A("s_mul_i32 s60, s2, 12")
        A("s_add_u32 s60, s60, s6")
        A("s_lshl_b32 s60, s60, 7")
        A(f"s_add_u32 s60, s60, {TS}")
        A("s_mov_b64 exec, 1")
        A("v_mov_b32 v1, 0")
        for i in range(nslots):
            A(f"v_mov_b32 v2, s{66 + 2 * i}")
            A(f"v_mov_b32 v3, s{67 + 2 * i}")
            A(f"buffer_store_dwordx2 v[2:3], v1, s[48:51], s60 offen offset:{8 * i}")
            A("s_nop 1")

    def tag4(r, TG):
        for i in range(4):
            A(f"v_bfi_b32 v{r + i}, s64, v{r + i}, v{TG + i}")

    A.label(NAME)
    stamp(0)
    A("s_cmp_ge_u32 s2, 256")
    A("s_cbranch_scc1 L_end")
    if remap:
        A("s_and_b32 s3, s2, 7")
        A("s_lshl_b32 s3, s3, 1")
        A("s_lshr_b32 s4, s2, 7")
        A("s_add_u32 s92, s3, s4")
        A("s_lshr_b32 s3, s92, 3")
    else:
        A("s_lshr_b32 s3, s2, 7")
    A("s_mul_i32 s4, s3, 40")
    A("s_add_u32 s4, s0, s4")
    A("s_addc_u32 s5, s1, 0")
    A("s_load_dwordx8 s[8:15], s[4:5], 0")
    A("s_load_dwordx2 s[16:17], s[4:5], 32")
    A("s_load_dwordx4 s[20:23], s[0:1], 80")
    A("s_load_dwordx2 s[24:25], s[0:1], 96")
    if remap:
        A("s_bfe_u32 s4, s2, 0x40003")
        A("s_and_b32 s5, s92, 7")
        A("s_lshl_b32 s92, s92, 4")
        A("s_add_u32 s92, s92, s4")
        A("s_lshr_b32 s93, s4, 1")
        A("s_lshl_b32 s93, s93, 3")
        A("s_add_u32 s93, s93, s5")
        A("s_lshl_b32 s93, s93, 1")
        A("s_and_b32 s4, s4, 1")
        A("s_add_u32 s93, s93, s4")
        A("s_lshl_b32 s4, s3, 7")
        A("s_add_u32 s93, s93, s4")
    else:
        A("s_mov_b32 s92, s2")
        A("s_mov_b32 s93, s2")
    A("v_lshrrev_b32 v1, 6, v0")
    A("v_mov_b32 v2, 0")
    A("v_readfirstlane_b32 s6, v1")
    A("v_and_b32 v1, 63, v0")
    A("s_and_b32 s26, s92, 127")
    A("s_and_b32 s94, s93, 127")
    A("v_lshrrev_b32 v4, 4, v1")
    A("s_mov_b64 s[96:97], -1")
    A("s_cmp_lt_u32 s6, 4")
    A("s_cbranch_scc0 L_att")

    W, XF, HT, HACC = 8, 40, 44, 76
    TG = 108
    PO = 144
    A("v_mov_b32 v8, 0")
    A("v_mov_b32 v9, 0")
    A("v_mov_b32 v10, 0")
    A("v_mov_b32 v11, 0")
    A("s_cmp_lg_u32 s6, 0")
    A("s_cbranch_scc1 L_noinit")
    A("ds_write_b128 v2, v[8:11]")
    A("ds_write_b128 v2, v[8:11] offset:16")
    A("ds_write_b128 v2, v[8:11] offset:48")
    A.label("L_noinit")
    A("s_lshr_b32 s27, s26, 2")
    A("s_and_b32 s52, s26, 3")
    A("v_and_b32 v5, 15, v1")
    A("v_and_b32 v2, 7, v1")
    A("v_lshlrev_b32 v2, 10, v2")
    A("v_lshl_add_u32 v2, v4, 4, v2")
    A("s_lshl_b32 s53, s52, 7")
    A("s_lshl_b32 s54, s6, 5")
    A("s_add_u32 s53, s53, s54")
    A("s_lshl_b32 s54, s53, 1")
    A("v_lshlrev_b32 v3, 16, v4")
    A("v_lshl_add_u32 v3, v5, 4, v3")
    A("s_lshl_b32 s56, s53, 13")
    A("s_lshl_b32 s55, s27, 8")
    A("s_add_u32 s56, s56, s55")
    A("s_waitcnt lgkmcnt(0)")
    srd(32, 14, 4194304)
    srd(28, 8, 8192)
    for e in range(8):
        A(f"buffer_load_dwordx4 v[{W + 4 * e}:{W + 4 * e + 3}], v3, s[32:35], s56 offen {ldflag}")
        if e < 7:
            A("s_add_u32 s56, s56, 8192")
    A(f"buffer_load_dwordx4 v[{XF}:{XF + 3}], v2, s[28:31], s54 offen")
    A("s_barrier")
    A("s_branch L_helper")

    A.label("L_att")
    KR, VR, QF, SR = 8, 72, 136, 152
    ACC, VT, PP = 8, 40, 136
    A("s_sub_u32 s7, s6, 4")
    A("s_lshr_b32 s36, s94, 1")
    A("s_lshl_b32 s36, s36, 20")
    A("s_and_b32 s37, s94, 1")
    A("s_lshl_b32 s37, s37, 17")
    A("s_add_u32 s36, s36, s37")
    A("s_lshl_b32 s37, s7, 14")
    A("s_add_u32 s36, s36, s37")
    A("s_add_u32 s36, s36, 786432")
    A("s_add_u32 s37, s36, 4096")
    A("s_add_u32 s38, s36, 8192")
    A("s_add_u32 s39, s36, 12288")
    A("v_and_b32 v2, 3, v1")
    A("v_lshlrev_b32 v2, 10, v2")
    A("v_bfe_u32 v3, v1, 2, 2")
    A("v_lshl_add_u32 v2, v3, 8, v2")
    A("v_lshl_add_u32 v2, v4, 4, v2")
    A("v_lshlrev_b32 v3, 4, v1")
    A("s_waitcnt lgkmcnt(0)")
    srd(28, 10, 67108864)
    srd(32, 12, 67108864)
    for T in range(4):
        for kk in range(4):
            if T * 4 + kk == pre_k:
                A("s_barrier")
            r = KR + (T * 4 + kk) * 4
            A(f"buffer_load_dwordx4 v[{r}:{r + 3}], v2, s[28:31], s{36 + T} offen offset:{kk * 64} {ldflag}")
    for i in range(16):
        r = VR + i * 4
        A(f"buffer_load_dwordx4 v[{r}:{r + 3}], v3, s[32:35], s{36 + i // 4} offen offset:{(i % 4) * 1024} {ldflag}")
    stamp(1)
    lds_inc(L_C4, 5, 6)
    srd(48, 24, WS_BYTES)
    A("s_mov_b32 s64, 0xfffffc00")
    A("v_and_b32 v7, 3, v1")
    A("v_lshlrev_b32 v7, 8, v7")
    A("v_lshl_add_u32 v7, v4, 4, v7")
    A(f"v_mov_b32 v6, {L_C3}")
    lds_wait_ge(6, 5, 4, sleep=2)
    stamp(2)
    A("s_setprio 1")
    for kk in range(4):
        A(f"ds_read_b128 v[{QF + 4 * kk}:{QF + 4 * kk + 3}], v7 offset:{L_QL + kk * 64}")
    A(f"s_mov_b32 s40, {C_SCALE}")
    A("s_mov_b32 s41, 0x05040100")
    A("s_mov_b32 s42, 0x07060302")
    A("s_waitcnt lgkmcnt(0)")
    for T in range(4):
        A(f"s_waitcnt vmcnt({28 - 4 * T})")
        for kk in range(4):
            r = KR + (T * 4 + kk) * 4
            c = "0" if kk == 0 else f"v[{SR + 4 * T}:{SR + 4 * T + 3}]"
            A(f"v_mfma_f32_16x16x32_bf16 v[{SR + 4 * T}:{SR + 4 * T + 3}], v[{r}:{r + 3}], v[{QF + 4 * kk}:{QF + 4 * kk + 3}], {c}")
    stamp(3)
    A("v_and_b32 v5, 3, v1")
    A("v_mul_u32_u24 v5, 528, v5")
    A("v_lshl_add_u32 v5, v4, 7, v5")
    A(f"s_mul_i32 s43, s7, {AP_A}")
    A(f"s_add_u32 s43, s43, {L_AP}")
    A("v_add_u32 v5, s43, v5")
    A("s_nop 3")
    A(f"v_max3_f32 v2, v{SR}, v{SR + 1}, v{SR + 2}")
    for i in range(3, 15, 2):
        A(f"v_max3_f32 v2, v2, v{SR + i}, v{SR + i + 1}")
    A(f"v_max_f32 v2, v2, v{SR + 15}")
    A("v_mov_b32 v3, v2")
    A("s_nop 1")
    A("v_permlane32_swap_b32 v2, v3")
    A("s_nop 1")
    A("v_max_f32 v2, v2, v3")
    A("v_mov_b32 v3, v2")
    A("s_nop 1")
    A("v_permlane16_swap_b32 v2, v3")
    A("s_nop 1")
    A("v_max_f32 v2, v2, v3")
    A("v_mul_f32 v2, s40, v2")
    for i in range(16):
        A(f"v_fma_f32 v{SR + i}, v{SR + i}, s40, -v2")
    for i in range(16):
        A(f"v_exp_f32 v{SR + i}, v{SR + i}")
    A("s_nop 0")
    for u in range(8):
        A(f"v_cvt_pk_bf16_f32 v{PP + u}, v{SR + 2 * u}, v{SR + 2 * u + 1}")
    A(f"v_add_f32 v3, v{SR}, v{SR + 1}")
    A(f"v_add_f32 v6, v{SR + 2}, v{SR + 3}")
    for i in range(4, 16, 2):
        A(f"v_add_f32 v3, v3, v{SR + i}")
        A(f"v_add_f32 v6, v6, v{SR + i + 1}")
    A("v_add_f32 v3, v3, v6")
    A("v_mov_b32 v6, v3")
    A("s_nop 1")
    A("v_permlane32_swap_b32 v3, v6")
    A("s_nop 1")
    A("v_add_f32 v3, v3, v6")
    A("v_mov_b32 v6, v3")
    A("s_nop 1")
    A("v_permlane16_swap_b32 v3, v6")
    A("s_nop 1")
    A("v_add_f32 v3, v3, v6")
    A("v_lshlrev_b32 v6, 5, v1")
    A("s_lshl_b32 s43, s7, 2")
    A(f"s_add_u32 s43, s43, {L_ST}")
    A("v_add_u32 v6, s43, v6")
    A("s_mov_b64 exec, 15")
    A("ds_write_b32 v6, v2")
    A("ds_write_b32 v6, v3 offset:128")
    A("s_mov_b64 exec, -1")
    ATG = 144
    A(f"v_mov_b32 v7, {L_TG}")
    A(f"ds_read_b128 v[{ATG}:{ATG + 3}], v7")
    A("s_and_b32 s43, s7, 3")
    A("s_lshl_b32 s56, s93, 11")
    A("s_lshl_b32 s55, s43, 9")
    A("s_add_u32 s56, s56, s55")
    A(f"s_add_u32 s56, s56, {OB}")
    A("s_lshl_b32 s57, s93, 6")
    A("s_lshl_b32 s55, s43, 4")
    A("s_add_u32 s57, s57, s55")
    A(f"s_add_u32 s57, s57, {OW}")
    A("v_and_b32 v2, 31, v1")
    A("v_lshlrev_b32 v2, 4, v2")
    A("s_mul_i32 s54, s43, 528")
    A(f"s_add_u32 s55, s54, {L_AP}")
    A("v_add_u32 v3, s55, v2")
    A(f"s_add_u32 s55, s54, {L_OL}")
    A("v_add_u32 v150, s55, v2")
    A("s_lshl_b32 s54, s43, 2")
    A(f"s_add_u32 s54, s54, {L_F6}")
    A("v_mov_b32 v151, s54")
    A("s_lshl_b32 s54, s43, 5")
    A(f"s_add_u32 s54, s54, {L_ST}")
    A("v_mov_b32 v6, s54")
    A(f"v_mov_b32 v7, {L_C5}")
    A("v_mov_b32 v148, 1")
    for G in range(2):
        for u in range(4):
            A(f"s_waitcnt vmcnt({15 - (8 * G + 2 * u + 1)})")
            r0 = VR + (8 * G + 2 * u) * 4
            r1 = r0 + 4
            for t in range(8):
                sel = "s41" if (t & 1) == 0 else "s42"
                A(f"v_perm_b32 v{VT + 4 * t + u}, v{r1 + (t >> 1)}, v{r0 + (t >> 1)}, {sel}")
        A("s_nop 1")
        for t in range(8):
            c = "0" if G == 0 else f"v[{ACC + 4 * t}:{ACC + 4 * t + 3}]"
            A(f"v_mfma_f32_16x16x32_bf16 v[{ACC + 4 * t}:{ACC + 4 * t + 3}], v[{VT + 4 * t}:{VT + 4 * t + 3}], v[{PP + 4 * G}:{PP + 4 * G + 3}], {c}")
    stamp(4)
    A("s_mov_b32 exec_lo, 0x000f000f")
    A("s_mov_b32 exec_hi, 0x000f000f")
    A("s_nop 0")
    for t in range(8):
        if t == 7:
            A("s_nop 0")
        A(f"ds_write_b128 v5, v[{ACC + 4 * t}:{ACC + 4 * t + 3}] offset:{16 * t}")
    A("s_mov_b64 exec, 1")
    A("s_waitcnt lgkmcnt(0)")
    A("ds_add_u32 v7, v148")
    A("s_setprio 0")
    A("s_cmp_lt_u32 s7, 4")
    if dry & 1:
        A("s_cselect_b64 s[96:97], 0, -1")
    else:
        A("s_cbranch_scc1 L_aend")
    ex_all()
    lds_wait_ge(7, 149, 8, sleep=0)
    A("s_setprio 1")
    stamp(5)
    CB, OA = 72, 8
    A(f"ds_read_b128 v[{CB}:{CB + 3}], v6")
    A(f"ds_read_b128 v[{CB + 4}:{CB + 7}], v6 offset:16")
    A(f"ds_read_b128 v[{CB + 8}:{CB + 11}], v6 offset:128")
    A(f"ds_read_b128 v[{CB + 12}:{CB + 15}], v6 offset:144")
    for a in range(8):
        A(f"ds_read_b128 v[{OA + 4 * a}:{OA + 4 * a + 3}], v3 offset:{a * AP_A}")
    A("s_waitcnt lgkmcnt(10)" if not instr else "s_waitcnt lgkmcnt(0)")
    A(f"v_max3_f32 v90, v{CB}, v{CB + 1}, v{CB + 2}")
    A(f"v_max3_f32 v90, v90, v{CB + 3}, v{CB + 4}")
    A(f"v_max3_f32 v90, v90, v{CB + 5}, v{CB + 6}")
    A(f"v_max_f32 v90, v90, v{CB + 7}")
    for a in range(8):
        A(f"v_sub_f32 v{CB + a}, v{CB + a}, v90")
    for a in range(8):
        A(f"v_exp_f32 v{CB + a}, v{CB + a}")
    A("s_waitcnt lgkmcnt(8)" if not instr else "s_waitcnt lgkmcnt(0)")
    A(f"v_mul_f32 v91, v{CB}, v{CB + 8}")
    for a in range(1, 8):
        A(f"v_fmac_f32 v91, v{CB + a}, v{CB + 8 + a}")
    A("v_rcp_f32 v92, v91")
    A("v_log_f32 v93, v91")
    A("s_waitcnt lgkmcnt(0)")
    for i in range(4):
        A(f"v_mul_f32 v{96 + i}, v{CB}, v{OA + i}")
    for a in range(1, 8):
        for i in range(4):
            A(f"v_fmac_f32 v{96 + i}, v{CB + a}, v{OA + 4 * a + i}")
    A("v_add_f32 v93, v93, v90")
    for i in range(4):
        A(f"v_mul_f32 v{96 + i}, v92, v{96 + i}")
    tag4(96, ATG)
    A("s_mov_b32 exec_hi, 0")
    live_only(lambda: A("buffer_store_dwordx4 v[96:99], v2, s[48:51], s56 offen"))
    A("v_and_b32 v94, s64, v93")
    A("v_sub_f32 v94, v93, v94")
    A(f"v_bfi_b32 v100, s64, v93, v{ATG}")
    A(f"v_bfi_b32 v101, s64, v94, v{ATG + 1}")
    A(f"v_bfi_b32 v102, s64, v93, v{ATG + 2}")
    A(f"v_bfi_b32 v103, s64, v93, v{ATG + 3}")
    A("ds_write_b128 v150, v[96:99]")
    ex_c(1)
    live_only(lambda: A("buffer_store_dwordx4 v[100:103], v2, s[48:51], s57 offen"))
    stamp(6)
    A("ds_write_b128 v150, v[100:103] offset:512")
    A("s_waitcnt lgkmcnt(0)")
    A("ds_write_b32 v151, v148")
    A.label("L_aend")
    dump_stamps(7)
    A("s_endpgm")

    A.label("L_helper")
    srd(36, 16, 4194304)
    srd(44, 20, 16384)
    srd(40, 22, 256)
    srd(48, 24, WS_BYTES)
    A(f"s_mov_b32 s65, {EP}")
    A("s_mov_b32 s64, 0xfffffc00")
    A("v_lshlrev_b32 v6, 4, v1")
    A("s_mov_b32 s58, 0x05040100")
    A("s_mov_b32 s59, 0x07060302")
    A("s_mov_b32 s98, 0")
    A("s_mov_b32 s99, 0")
    A("s_cmp_lg_u32 s6, 0")
    A("s_cbranch_scc1 L_noepoch")
    A("s_load_dwordx2 s[62:63], s[24:25], s65")
    A("s_waitcnt lgkmcnt(0)")
    A("s_add_u32 s62, s62, 1")
    A("s_addc_u32 s63, s63, 0")
    A("s_and_b32 s54, s62, 0x3ff")
    A(f"v_mov_b32 v{TG}, s54")
    A("s_lshr_b32 s54, s62, 10")
    A("s_add_u32 s54, s54, s62")
    A("s_and_b32 s54, s54, 0x3ff")
    A(f"v_mov_b32 v{TG + 1}, s54")
    A("s_lshr_b32 s54, s62, 20")
    A("s_add_u32 s54, s54, s62")
    A("s_and_b32 s54, s54, 0x3ff")
    A(f"v_mov_b32 v{TG + 2}, s54")
    A("s_lshr_b64 s[54:55], s[62:63], 30")
    A("s_add_u32 s54, s54, s62")
    A("s_and_b32 s54, s54, 0x3ff")
    A(f"v_mov_b32 v{TG + 3}, s54")
    A(f"v_mov_b32 v113, {L_TG}")
    A("s_mov_b64 exec, 1")
    A(f"ds_write_b128 v113, v[{TG}:{TG + 3}]")
    A("s_mov_b64 exec, -1")
    A.label("L_noepoch")

    def transpose(first_wait):
        for u in range(4):
            A(f"s_waitcnt vmcnt({first_wait - (2 * u + 1)})")
            r0 = W + 8 * u
            r1 = r0 + 4
            for t in range(8):
                sel = "s58" if (t & 1) == 0 else "s59"
                A(f"v_perm_b32 v{HT + 4 * t + u}, v{r1 + (t >> 1)}, v{r0 + (t >> 1)}, {sel}")

    def do_mfma(bop):
        for t in range(8):
            A(f"v_mfma_f32_16x16x32_bf16 v[{HACC + 4 * t}:{HACC + 4 * t + 3}], v[{HT + 4 * t}:{HT + 4 * t + 3}], v[{bop}:{bop + 3}], 0")

    def check(regs4, tmp):
        n = 0
        for r in regs4:
            for i in range(4):
                A(f"v_xor_b32 v{tmp + n}, v{r + i}, v{TG + i}")
                n += 1
        live = list(range(tmp, tmp + n))
        while len(live) > 1:
            nxt = []
            while len(live) >= 3:
                a, b, c = live[:3]
                live = live[3:]
                A(f"v_or3_b32 v{a}, v{a}, v{b}, v{c}")
                nxt.append(a)
            if len(live) == 2 and not nxt:
                A(f"v_or_b32 v{live[0]}, v{live[0]}, v{live[1]}")
                nxt.append(live[0])
                live = []
            live = nxt + live
        A(f"v_and_b32 v{live[0]}, 0x3ff, v{live[0]}")
        A(f"v_cmp_ne_u32 vcc, 0, v{live[0]}")

    def pub_q_global(name):
        A(f"s_cbranch_execz L_pq_{name}")
        A("s_cmp_lg_u32 s98, 0")
        A(f"s_cbranch_scc1 L_pq_{name}")
        A("s_mov_b64 s[30:31], exec")
        A("s_mov_b64 exec, -1")
        A(f"s_add_u32 s95, s95, {GOFF}")
        A("buffer_store_dwordx4 v[116:119], v0, s[48:51], s95 offen sc1")
        A("s_mov_b32 s98, 1")
        A("s_mov_b64 exec, s[30:31]")
        A.label(f"L_pq_{name}")

    def pub_o_global(name, wait):
        A(f"s_cbranch_execz L_po_{name}")
        A("s_cmp_lg_u32 s99, 0")
        A(f"s_cbranch_scc1 L_po_{name}")
        A("s_mov_b64 s[30:31], exec")
        A("s_mov_b64 exec, -1")
        A("s_lshl_b32 s32, s6, 2")
        A(f"s_add_u32 s32, s32, {L_F6}")
        A("v_mov_b32 v137, s32")
        if wait:
            lds_wait_ge(137, 138, 1, sleep=1)
        else:
            A("ds_read_b32 v138, v137")
            A("s_waitcnt lgkmcnt(0)")
            A("v_readfirstlane_b32 s32, v138")
            A("s_cmp_eq_u32 s32, 0")
            A(f"s_cbranch_scc1 L_por_{name}")
        A("s_mul_i32 s32, s6, 528")
        A(f"s_add_u32 s32, s32, {L_OL}")
        A("v_lshlrev_b32 v137, 4, v3")
        A("v_add_u32 v138, s32, v137")
        A("v_mov_b32 v139, s32")
        A("ds_read_b128 v[140:143], v138")
        A("ds_read_b128 v[164:167], v139 offset:512")
        A("s_lshl_b32 s32, s93, 11")
        A("s_lshl_b32 s33, s6, 9")
        A("s_add_u32 s32, s32, s33")
        A(f"s_add_u32 s32, s32, {OB + GOFF}")
        A("s_lshl_b32 s34, s93, 6")
        A("s_lshl_b32 s33, s6, 4")
        A("s_add_u32 s34, s34, s33")
        A(f"s_add_u32 s34, s34, {OW + GOFF}")
        A("s_waitcnt lgkmcnt(0)")
        A("s_mov_b32 exec_hi, 0")
        A("buffer_store_dwordx4 v[140:143], v137, s[48:51], s32 offen sc1")
        A("s_mov_b64 exec, 1")
        A("buffer_store_dwordx4 v[164:167], v137, s[48:51], s34 offen sc1")
        A("s_mov_b32 s99, 1")
        A.label(f"L_por_{name}")
        A("s_mov_b64 exec, s[30:31]")
        A.label(f"L_po_{name}")

    def toggle(name, alt):
        if not alt:
            return
        A(f"s_cmp_gt_u32 s60, {SPIN_MAX - N_LOCAL}")
        A(f"s_cbranch_scc1 L_tg_{name}")
        for r in alt:
            A(f"s_xor_b32 s{r}, s{r}, {GOFF}")
        if name[0] == "q":
            pub_q_global(name)
        else:
            pub_o_global(name, False)
        A.label(f"L_tg_{name}")

    def poll2(name, loads, nl, regs4, tmp, thr, sleep, depth, alt=()):
        A(f"s_mov_b32 s60, {SPIN_MAX}")
        A.label(f"L_pa_{name}")
        live_only(lambda: (loads(), A("s_waitcnt vmcnt(0)")))
        check(regs4, tmp)
        if thr:
            A(f"s_cbranch_execz L_pbs_{name}")
        A(f"s_cbranch_vccz L_pok_{name}")
        A("s_mov_b64 exec, vcc")
        if thr:
            A("s_bcnt1_i32_b64 s61, vcc")
            A(f"s_cmp_le_u32 s61, {thr}")
            A(f"s_cbranch_scc1 L_pbs_{name}")
        if sleep:
            A(f"s_sleep {sleep}")
        toggle(name + "a", alt)
        A("s_sub_u32 s60, s60, 1")
        A("s_cmp_lg_u32 s60, 0")
        A(f"s_cbranch_scc1 L_pa_{name}")
        if thr:
            A(f"s_branch L_pok_{name}")
            A.label(f"L_pbs_{name}")
            A(f"s_cbranch_execz L_pbc_{name}")
            for d in range(depth):
                loads()
            A.label(f"L_pb_{name}")
            A(f"s_waitcnt vmcnt({nl * (depth - 1)})")
            if alt and depth > 1:
                A(f"s_cmp_gt_u32 s60, {SPIN_MAX - N_LOCAL}")
                A(f"s_cbranch_scc1 L_pbn_{name}")
                A("s_waitcnt vmcnt(0)")
                A.label(f"L_pbn_{name}")
            A.label(f"L_pbc_{name}")
            check(regs4, tmp)
            A(f"s_cbranch_vccz L_pok_{name}")
            A("s_mov_b64 exec, vcc")
            toggle(name + "b", alt)
            loads()
            A("s_sub_u32 s60, s60, 1")
            A("s_cmp_lg_u32 s60, 0")
            A(f"s_cbranch_scc1 L_pb_{name}")
        A.label(f"L_pok_{name}")
        ex_all()

    transpose(8)
    stamp(1)
    A("v_mul_u32_u24 v7, 528, v5")
    A("v_lshl_add_u32 v7, v4, 7, v7")
    A(f"s_mul_i32 s54, s6, {QR_W}")
    A(f"s_add_u32 s54, s54, {L_QR}")
    A("v_add_u32 v7, s54, v7")
    A("s_waitcnt vmcnt(0)")
    do_mfma(XF)
    A("v_lshrrev_b32 v2, 5, v1")
    A("s_lshl_b32 s54, s6, 1")
    A("v_add_u32 v2, s54, v2")
    A("v_and_b32 v3, 31, v1")
    A("v_mul_u32_u24 v112, 528, v2")
    A("v_lshl_add_u32 v112, v3, 4, v112")
    A(f"v_add_u32 v112, {L_QR}, v112")

    def reduce_helpers(cnt, dst, tags=False):
        A(f"v_mov_b32 v132, {cnt}")
        A("v_mov_b32 v133, 1")
        ex_pat(0x00ff00ff)
        for t in range(8):
            A(f"ds_write_b128 v7, v[{HACC + 4 * t}:{HACC + 4 * t + 3}] offset:{16 * t}")
        ex_c(1)
        A("s_waitcnt lgkmcnt(0)")
        A("ds_add_u32 v132, v133")
        ex_all()
        lds_wait_ge(132, 133, 4, sleep=0)
        if tags:
            A(f"v_mov_b32 v132, {L_TG}")
            A(f"ds_read_b128 v[{TG}:{TG + 3}], v132")
        for w in range(4):
            A(f"ds_read_b128 v[{dst + 4 * w}:{dst + 3 + 4 * w}], v112 offset:{w * QR_W}")
        A("s_waitcnt lgkmcnt(0)")
        for i in range(4):
            A(f"v_add_f32 v{dst + i}, v{dst + i}, v{dst + 4 + i}")
            A(f"v_add_f32 v{dst + 8 + i}, v{dst + 8 + i}, v{dst + 12 + i}")
        for i in range(4):
            A(f"v_add_f32 v{dst + i}, v{dst + i}, v{dst + 8 + i}")

    reduce_helpers(L_C1, 116, tags=True)
    tag4(116, TG)
    A("v_lshlrev_b32 v0, 16, v2")
    A("v_lshl_add_u32 v0, v3, 4, v0")
    A("s_lshl_b32 s95, s3, 19")
    A("s_lshl_b32 s55, s27, 11")
    A("s_add_u32 s95, s95, s55")
    A("s_lshl_b32 s55, s52, 9")
    A("s_add_u32 s95, s95, s55")
    A("buffer_store_dwordx4 v[116:119], v0, s[48:51], s95 offen")
    stamp(2)
    A("s_lshr_b32 s54, s94, 1")
    A("s_lshl_b32 s54, s54, 13")
    A("s_lshl_b32 s55, s3, 19")
    A("s_add_u32 s54, s54, s55")
    A("s_lshl_b32 s55, s6, 11")
    A("s_add_u32 s54, s54, s55")
    A("v_lshrrev_b32 v113, 5, v1")
    A("v_lshlrev_b32 v113, 10, v113")
    A("v_lshl_add_u32 v113, v3, 4, v113")
    A("v_lshrrev_b32 v114, 3, v3")
    A("v_lshlrev_b32 v114, 6, v114")
    A("v_and_b32 v115, 7, v3")
    A("v_lshl_add_u32 v114, v115, 1, v114")
    A("s_lshl_b32 s55, s6, 8")
    A(f"s_add_u32 s55, s55, {L_QL}")
    A("v_add_u32 v114, s55, v114")

    def qloads():
        A("buffer_load_dwordx4 v[120:123], v113, s[48:51], s54 offen sc1")
        A("buffer_load_dwordx4 v[124:127], v113, s[48:51], s54 offen offset:512 sc1")
    poll2("q", qloads, 2, [120, 124], 128, 0, q_sleep, 1, alt=(54,))
    stamp(3)
    for i in range(4):
        A(f"v_add_f32 v{120 + i}, v{120 + i}, v{124 + i}")
    for i in range(4):
        A(f"v_mov_b32 v{124 + i}, v{120 + i}")
    A("s_nop 1")
    for i in range(4):
        A(f"v_permlane32_swap_b32 v{120 + i}, v{124 + i}")
    A("s_nop 1")
    for i in range(4):
        A(f"v_add_f32 v{120 + i}, v{120 + i}, v{124 + i}")
    A("v_cvt_pk_bf16_f32 v120, v120, v121")
    A("v_cvt_pk_bf16_f32 v122, v122, v123")
    A("s_mov_b32 exec_hi, 0")
    A("ds_write_b16 v114, v120")
    A("ds_write_b16_d16_hi v114, v120 offset:16")
    A("ds_write_b16 v114, v122 offset:32")
    A("ds_write_b16_d16_hi v114, v122 offset:48")
    A("s_waitcnt lgkmcnt(0)")
    A("s_mov_b64 exec, -1")
    lds_inc(L_C3, 113, 114)
    stamp(4)
    A("v_lshlrev_b32 v115, 11, v4")
    A("v_lshl_add_u32 v115, v5, 4, v115")
    A("s_lshl_b32 s56, s27, 7")
    A("s_lshl_b32 s55, s6, 5")
    A("s_add_u32 s56, s56, s55")
    A("s_lshl_b32 s56, s56, 10")
    A("s_lshl_b32 s55, s52, 8")
    A("s_add_u32 s56, s56, s55")
    A("v_and_b32 v113, 7, v1")
    A("v_lshlrev_b32 v113, 4, v113")
    A("v_bfe_u32 v114, v1, 3, 1")
    A("v_add_u32 v113, v113, v114")
    A("s_lshr_b32 s54, s27, 2")
    A("s_lshl_b32 s54, s54, 1")
    A("s_lshl_b32 s55, s3, 7")
    A("s_add_u32 s54, s54, s55")
    A("v_add_u32 v113, s54, v113")
    A("v_lshlrev_b32 v114, 6, v113")
    A("v_lshlrev_b32 v113, 11, v113")
    A("v_lshl_add_u32 v113, v4, 5, v113")
    A("s_and_b32 s55, s27, 3")
    A("s_lshl_b32 s54, s55, 9")
    A("s_lshl_b32 s53, s6, 7")
    A("s_add_u32 s54, s54, s53")
    A(f"s_add_u32 s54, s54, {OB}")
    A("s_lshl_b32 s55, s55, 4")
    A(f"s_add_u32 s55, s55, {OW}")
    A("v_lshlrev_b32 v134, 2, v2")
    A("v_lshrrev_b32 v135, 3, v3")
    A("v_add_u32 v134, v134, v135")
    A("v_lshlrev_b32 v134, 12, v134")
    A("v_and_b32 v135, 7, v3")
    A("v_lshl_add_u32 v134, v135, 4, v134")
    A("s_lshl_b32 s53, s3, 19")
    A("s_lshl_b32 s57, s52, 17")
    A("s_add_u32 s53, s53, s57")
    A("s_lshl_b32 s57, s27, 7")
    A("s_add_u32 s53, s53, s57")
    A(f"s_add_u32 s53, s53, {PB}")
    A("s_xor_b32 s100, s92, 128")
    A("s_lshl_b32 s100, s100, 12")
    A(f"s_add_u32 s100, s100, {PB}")
    A("s_bfe_u32 s101, s26, 0x30002")
    A("s_lshl_b32 s101, s101, 11")
    A("s_xor_b32 s57, s3, 1")
    A("s_lshl_b32 s57, s57, 10")
    A("s_add_u32 s101, s101, s57")
    A("s_lshr_b32 s57, s26, 5")
    A("s_lshl_b32 s57, s57, 8")
    A("s_add_u32 s101, s101, s57")
    A("s_and_b32 s57, s26, 3")
    A("s_lshl_b32 s57, s57, 6")
    A("s_add_u32 s101, s101, s57")
    A("v_lshlrev_b32 v135, 1, v1")
    A("v_bfe_u32 v136, v1, 3, 2")
    A("v_cmp_eq_u32 s[8:9], 1, v136")
    A("v_cmp_eq_u32 s[10:11], 2, v136")
    A("v_cmp_eq_u32 s[12:13], 3, v136")
    if tlb:
        A("s_mov_b64 exec, 1")
        A("buffer_load_dword v160, v134, s[48:51], s53 offen")
        A("buffer_load_dword v161, v6, s[48:51], s100 offen")
        A("buffer_load_ushort v162, v135, s[44:47], s101 offen")
        A("buffer_load_dword v163, v115, s[36:39], s56 offen")
        A("s_mov_b64 exec, -1")
    A("s_cmp_lg_u32 s6, 3")
    A("s_cbranch_scc1 L_noarr")
    A("v_mov_b32 v132, 0")
    A("v_mov_b32 v133, 1")
    A("s_mov_b64 exec, 1")
    A("buffer_atomic_add v133, v132, s[40:43], 0 offen")
    A("s_mov_b64 exec, -1")
    A("s_branch L_tail")
    A.label("L_noarr")
    if dry & 2:
        A("s_mov_b64 s[96:97], 0")
        A("s_mov_b64 exec, 0")
    A.label("L_tail")
    A(f"v_mov_b32 v132, {L_C4}")
    lds_wait_ge(132, 133, 8, sleep=2)
    stamp(5)
    pub_q_global("c4")
    if wo_c5:
        A(f"v_mov_b32 v132, {L_C5}")
        lds_wait_ge(132, 133, wo_c5, sleep=1)
    stamp(6)
    def wo_loads():
        for e in range(8):
            A(f"s_add_u32 s57, s56, {8 * (e & 3) * 1024}")
            A(f"buffer_load_dwordx4 v[{W + 4 * e}:{W + 4 * e + 3}], v115, s[36:39], s57 offen offset:{(e >> 2) * 1024} {ldflag}")
    live_only(wo_loads)
    transpose(7)
    stamp(8)

    def oloads():
        A(f"buffer_load_dwordx4 v[{PO}:{PO + 3}], v113, s[48:51], s54 offen sc1")
        A(f"buffer_load_dwordx4 v[{PO + 4}:{PO + 7}], v113, s[48:51], s54 offen offset:16 sc1")
        A(f"buffer_load_dwordx4 v[{PO + 8}:{PO + 11}], v114, s[48:51], s55 offen sc1")
    poll2("o", oloads, 3, [PO, PO + 4, PO + 8], 116, o_thr, o_sleep, o_depth, alt=(54, 55))
    stamp(9)
    A(f"v_and_b32 v128, s64, v{PO + 8}")
    A(f"v_add_f32 v128, v128, v{PO + 9}")
    A("s_nop 1")
    A("v_mov_b32_dpp v129, v128 row_ror:8 row_mask:0xf bank_mask:0xf")
    A("v_sub_f32 v129, v129, v128")
    A("v_exp_f32 v129, v129")
    A("s_nop 0")
    A("v_add_f32 v129, 1.0, v129")
    A("v_rcp_f32 v129, v129")
    A("s_nop 0")
    for i in range(8):
        A(f"v_mul_f32 v{116 + i}, v129, v{PO + i}")
    for i in range(8):
        A(f"v_add_f32_dpp v{156 + i}, v{116 + i}, v{116 + i} row_ror:8 row_mask:0xf bank_mask:0xf")
    for u in range(4):
        A(f"v_cvt_pk_bf16_f32 v{XF + u}, v{156 + 2 * u}, v{156 + 2 * u + 1}")
    A("s_nop 1")
    do_mfma(XF)
    A("s_nop 3")
    reduce_helpers(L_C2, 116)
    tag4(116, TG)
    live_only(lambda: A("buffer_store_dwordx4 v[116:119], v134, s[48:51], s53 offen sc1"))
    stamp(10)
    A("s_cmp_eq_u32 s6, 0")
    A("s_cbranch_scc1 L_final")
    pub_o_global("end", True)
    A("s_cbranch_execz L_hend")
    A("s_cmp_lg_u32 s6, 1")
    A("s_cbranch_scc1 L_hend")
    A("s_cmp_lg_u32 s2, 0")
    A("s_cbranch_scc1 L_hend")
    A("s_load_dwordx2 s[62:63], s[24:25], s65")
    A("s_waitcnt lgkmcnt(0)")
    A("s_add_u32 s62, s62, 1")
    A("s_addc_u32 s63, s63, 0")
    A("v_mov_b32 v60, 0")
    A("s_mov_b64 exec, 1")
    A(f"s_mov_b32 s60, {SPIN_MAX}")
    A.label("L_epw")
    A("buffer_load_dword v54, v60, s[40:43], 0 offen sc1")
    A("s_waitcnt vmcnt(0)")
    A("v_readfirstlane_b32 s61, v54")
    A("s_cmp_ge_u32 s61, 256")
    A("s_cbranch_scc1 L_epok")
    A("s_sub_u32 s60, s60, 1")
    A("s_cmp_lg_u32 s60, 0")
    A("s_cbranch_scc1 L_epw")
    A.label("L_epok")
    A("v_mov_b32 v52, s62")
    A("v_mov_b32 v53, s63")
    A("buffer_store_dwordx2 v[52:53], v60, s[48:51], s65 offen")
    A("s_branch L_hend")
    A.label("L_final")
    pub_o_global("end0", True)

    def ploads():
        for i in range(4):
            A(f"buffer_load_dwordx4 v[{8 + 4 * i}:{11 + 4 * i}], v6, s[48:51], s100 offen offset:{1024 * i} sc1")
    poll2("p", ploads, 4, [8, 12, 16, 20], 24, p_thr, p_sleep, p_depth)
    stamp(11)
    for i in range(4):
        A(f"v_add_f32 v{44 + i}, v{8 + i}, v{12 + i}")
        A(f"v_add_f32 v{48 + i}, v{16 + i}, v{20 + i}")
    for i in range(4):
        A(f"v_add_f32 v{44 + i}, v{44 + i}, v{48 + i}")
    A("s_nop 1")
    for i in range(4):
        A(f"v_add_f32_dpp v{48 + i}, v{44 + i}, v{44 + i} row_ror:8 row_mask:0xf bank_mask:0xf")
    for i in range(4):
        A(f"v_mov_b32 v{44 + i}, v{48 + i}")
    A("s_nop 1")
    for i in range(4):
        A(f"v_permlane16_swap_b32 v{44 + i}, v{48 + i}")
    A("s_nop 1")
    for i in range(4):
        A(f"v_add_f32 v{48 + i}, v{44 + i}, v{48 + i}")
    for i in range(4):
        A(f"v_mov_b32 v{44 + i}, v{48 + i}")
    A("s_nop 1")
    for i in range(4):
        A(f"v_permlane32_swap_b32 v{44 + i}, v{48 + i}")
    A("s_nop 1")
    for i in range(4):
        A(f"v_add_f32 v{48 + i}, v{44 + i}, v{48 + i}")
    A("v_cndmask_b32 v48, v48, v49, s[8:9]")
    A("v_cndmask_b32 v48, v48, v50, s[10:11]")
    A("v_cndmask_b32 v48, v48, v51, s[12:13]")
    A("v_cvt_pk_bf16_f32 v48, v48, v48")
    A("s_mov_b32 exec_hi, 0")
    live_only(lambda: A("buffer_store_short v48, v135, s[44:47], s101 offen"))
    stamp(12)
    A.label("L_hend")
    if dry & 2:
        A("s_cbranch_execnz L_hexit")
        A("s_mov_b64 s[96:97], -1")
        A("s_mov_b64 exec, -1")
        A("s_branch L_tail")
        A.label("L_hexit")
    dump_stamps(13)
    A.label("L_end")
    A("s_endpgm")

    out = [HEADER.rstrip("\n")]
    out.append(f"; @launch grid=(256,1,1) block=(768,1,1) lds={LDS_BYTES}")
    out.append('.amdgcn_target "amdgcn-amd-amdhsa--gfx950"')
    out.append(".text")
    out.append(f".globl {NAME}")
    out.append(".p2align 8")
    out.append(f".type {NAME},@function")
    out += A.L
    out.append('.section .rodata,"a"')
    out.append(".p2align 6")
    out.append(f".amdhsa_kernel {NAME}")
    out.append("  .amdhsa_next_free_vgpr 168")
    out.append("  .amdhsa_next_free_sgpr 102")
    out.append("  .amdhsa_accum_offset 168")
    out.append("  .amdhsa_group_segment_fixed_size 0")
    out.append("  .amdhsa_kernarg_size 104")
    out.append("  .amdhsa_user_sgpr_count 2")
    out.append("  .amdhsa_user_sgpr_kernarg_segment_ptr 1")
    out.append("  .amdhsa_system_sgpr_workgroup_id_x 1")
    out.append(".end_amdhsa_kernel")
    return "\n".join(out) + "\n"


if __name__ == "__main__":
    import argparse
    ap = argparse.ArgumentParser()
    ap.add_argument("-o", default="concat_heads__sliding_block_cached__sliding_block_cached__decode.s")
    ap.add_argument("--instr", action="store_true")
    ap.add_argument("--ldflag", default="nt")
    for nm, dv in (("q_sleep", 4), ("o_thr", 16), ("o_sleep", 1), ("o_depth", 3), ("p_thr", 16), ("p_sleep", 2),
                   ("p_depth", 3), ("remap", 1), ("pre_k", 4), ("wo_c5", 0), ("dry", 3), ("tlb", 1)):
        ap.add_argument("--" + nm.replace("_", "-"), type=int, default=dv)
    a = ap.parse_args()
    kw = vars(a).copy()
    o = kw.pop("o")
    open(o, "w").write(gen(**kw))
```

```python
import sys, math, struct

NAME = "concat_heads__sliding_block_cached__sliding_block_cached__decode_kernel"

HEADER = """; Kernarg layout for this problem (104 bytes, ptrs only, base s[0:1]):
;
"""

def f32bits(x):
    return struct.unpack("<I", struct.pack("<f", x))[0]

C_SCALE = f32bits(math.log2(math.e) / math.sqrt(128.0))

QP = 0x000000
OB = 0x100000
OW = 0x180000
PB = 0x200000
EP = 0x300000
TS = 0x400000
WS_BYTES = 285229056
GOFF = 0x800000
N_LOCAL = 256

L_C1, L_C2, L_C3, L_C5, L_C4 = 0, 4, 8, 12, 16
L_TG = 32
L_F6 = 48
L_QL = 64
L_ST = 1088
L_QR = 1536
QR_W = 4224
L_AP = L_QR + 4 * QR_W
AP_A = 2112
L_OL = L_AP + 8 * AP_A
LDS_BYTES = L_OL + 4 * 528

SPIN_MAX = 1 << 20


class Asm:
    def __init__(self):
        self.L = []
        self.nlab = 0

    def __call__(self, s):
        self.L.append("    " + s)

    def label(self, s):
        self.L.append(s + ":")

    def newlabel(self, pfx="L"):
        self.nlab += 1
        return f"{pfx}_{self.nlab}"


def gen(instr=False, ldflag="nt", q_sleep=4, o_thr=16, o_sleep=1, o_depth=3, p_thr=16, p_sleep=2, p_depth=3,
        remap=1, pre_k=4, wo_c5=0, dry=3, tlb=3):
    A = Asm()

    def stamp(slot):
        if instr:
            A(f"s_memrealtime s[{66 + 2 * slot}:{67 + 2 * slot}]")

    def srd(d, lo, nbytes):
        A(f"s_mov_b32 s{d}, s{lo}")
        A(f"s_and_b32 s{d + 1}, s{lo + 1}, 0xffff")
        A(f"s_mov_b32 s{d + 2}, {nbytes}")
        A(f"s_mov_b32 s{d + 3}, 0x20000")

    def ex_all():
        A("s_mov_b64 exec, s[96:97]")

    def ex_c(c):
        A(f"s_and_b64 exec, s[96:97], {c}")

    def ex_pat(p):
        A(f"s_and_b32 exec_lo, s96, {p:#x}")
        A(f"s_and_b32 exec_hi, s97, {p:#x}")

    def ex_lo32():
        A("s_mov_b32 exec_lo, s96")
        A("s_mov_b32 exec_hi, 0")

    def live_only(fn):
        lab = A.newlabel("L_lo")
        A(f"s_cbranch_execz {lab}")
        fn()
        A.label(lab)

    def lds_wait_ge(addr_v, tmp_v, val, sleep=1):
        lab = A.newlabel("L_lw")
        done = A.newlabel("L_lwd")
        A(f"s_mov_b32 s60, {SPIN_MAX}")
        A.label(lab)
        A(f"ds_read_b32 v{tmp_v}, v{addr_v}")
        A("s_waitcnt lgkmcnt(0)")
        A(f"v_readfirstlane_b32 s61, v{tmp_v}")
        A(f"s_cbranch_execz {done}")
        A(f"s_cmp_ge_u32 s61, {val}")
        A(f"s_cbranch_scc1 {done}")
        if sleep:
            A(f"s_sleep {sleep}")
        A("s_sub_u32 s60, s60, 1")
        A("s_cmp_lg_u32 s60, 0")
        A(f"s_cbranch_scc1 {lab}")
        A.label(done)

    def lds_inc(addr, va, vb):
        A(f"v_mov_b32 v{va}, 1")
        A(f"v_mov_b32 v{vb}, {addr}")
        ex_c(1)
        A(f"ds_add_u32 v{vb}, v{va}")
        ex_all()

    def dump_stamps(nslots):
        if not instr:
            return
        A("s_waitcnt lgkmcnt(0)")
        A("s_mul_i32 s60, s2, 12")
        A("s_add_u32 s60, s60, s6")
        A("s_lshl_b32 s60, s60, 7")
        A(f"s_add_u32 s60, s60, {TS}")
        A("s_mov_b64 exec, 1")
        A("v_mov_b32 v1, 0")
        for i in range(nslots):
            A(f"v_mov_b32 v2, s{66 + 2 * i}")
            A(f"v_mov_b32 v3, s{67 + 2 * i}")
            A(f"buffer_store_dwordx2 v[2:3], v1, s[48:51], s60 offen offset:{8 * i}")
            A("s_nop 1")

    def tag4(r, TG):
        for i in range(4):
            A(f"v_bfi_b32 v{r + i}, s64, v{r + i}, v{TG + i}")

    A.label(NAME)
    stamp(0)
    A("s_cmp_ge_u32 s2, 256")
    A("s_cbranch_scc1 L_end")
    if remap:
        A("s_and_b32 s3, s2, 7")
        A("s_lshl_b32 s3, s3, 1")
        A("s_lshr_b32 s4, s2, 7")
        A("s_add_u32 s92, s3, s4")
        A("s_lshr_b32 s3, s92, 3")
    else:
        A("s_lshr_b32 s3, s2, 7")
    A("s_mul_i32 s4, s3, 40")
    A("s_add_u32 s4, s0, s4")
    A("s_addc_u32 s5, s1, 0")
    A("s_load_dwordx8 s[8:15], s[4:5], 0")
    A("s_load_dwordx2 s[16:17], s[4:5], 32")
    A("s_load_dwordx4 s[20:23], s[0:1], 80")
    A("s_load_dwordx2 s[24:25], s[0:1], 96")
    if remap:
        A("s_bfe_u32 s4, s2, 0x40003")
        A("s_and_b32 s5, s92, 7")
        A("s_lshl_b32 s92, s92, 4")
        A("s_add_u32 s92, s92, s4")
        A("s_lshr_b32 s93, s4, 1")
        A("s_lshl_b32 s93, s93, 3")
        A("s_add_u32 s93, s93, s5")
        A("s_lshl_b32 s93, s93, 1")
        A("s_and_b32 s4, s4, 1")
        A("s_add_u32 s93, s93, s4")
        A("s_lshl_b32 s4, s3, 7")
        A("s_add_u32 s93, s93, s4")
    else:
        A("s_mov_b32 s92, s2")
        A("s_mov_b32 s93, s2")
    A("v_lshrrev_b32 v1, 6, v0")
    A("v_mov_b32 v2, 0")
    A("v_readfirstlane_b32 s6, v1")
    A("v_and_b32 v1, 63, v0")
    A("s_and_b32 s26, s92, 127")
    A("s_and_b32 s94, s93, 127")
    A("v_lshrrev_b32 v4, 4, v1")
    A("s_mov_b64 s[96:97], -1")
    A("s_cmp_lt_u32 s6, 4")
    A("s_cbranch_scc0 L_att")

    W, XF, HT, HACC = 8, 40, 44, 76
    TG = 108
    PO = 144
    A("v_mov_b32 v8, 0")
    A("v_mov_b32 v9, 0")
    A("v_mov_b32 v10, 0")
    A("v_mov_b32 v11, 0")
    A("s_cmp_lg_u32 s6, 0")
    A("s_cbranch_scc1 L_noinit")
    A("ds_write_b128 v2, v[8:11]")
    A("ds_write_b128 v2, v[8:11] offset:16")
    A("ds_write_b128 v2, v[8:11] offset:48")
    A.label("L_noinit")
    A("s_lshr_b32 s27, s26, 2")
    A("s_and_b32 s52, s26, 3")
    A("v_and_b32 v5, 15, v1")
    A("v_and_b32 v2, 7, v1")
    A("v_lshlrev_b32 v2, 10, v2")
    A("v_lshl_add_u32 v2, v4, 4, v2")
    A("s_lshl_b32 s53, s52, 7")
    A("s_lshl_b32 s54, s6, 5")
    A("s_add_u32 s53, s53, s54")
    A("s_lshl_b32 s54, s53, 1")
    A("v_lshlrev_b32 v3, 16, v4")
    A("v_lshl_add_u32 v3, v5, 4, v3")
    A("s_lshl_b32 s56, s53, 13")
    A("s_lshl_b32 s55, s27, 8")
    A("s_add_u32 s56, s56, s55")
    A("s_waitcnt lgkmcnt(0)")
    srd(32, 14, 4194304)
    srd(28, 8, 8192)
    for e in range(8):
        A(f"buffer_load_dwordx4 v[{W + 4 * e}:{W + 4 * e + 3}], v3, s[32:35], s56 offen {ldflag}")
        if e < 7:
            A("s_add_u32 s56, s56, 8192")
    A(f"buffer_load_dwordx4 v[{XF}:{XF + 3}], v2, s[28:31], s54 offen")
    srd(36, 16, 4194304)
    srd(44, 20, 16384)
    srd(48, 24, WS_BYTES)
    if tlb & 2:
        A("v_mov_b32 v159, 0")
        A("s_lshl_b32 s55, s27, 17")
        A(f"s_mov_b32 s57, {PB}")
        A("s_mov_b64 exec, 1")
        A("buffer_load_dword v160, v159, s[48:51], 0 offen")
        A("buffer_load_dword v161, v159, s[48:51], s57 offen")
        A("buffer_load_dword v162, v159, s[44:47], 0 offen")
        A("buffer_load_dword v163, v159, s[36:39], s55 offen")
        A("s_mov_b64 exec, -1")
    A("s_barrier")
    A("s_branch L_helper")

    A.label("L_att")
    KR, VR, QF, SR = 8, 72, 136, 152
    ACC, VT, PP = 8, 40, 136
    A("s_sub_u32 s7, s6, 4")
    A("s_lshr_b32 s36, s94, 1")
    A("s_lshl_b32 s36, s36, 20")
    A("s_and_b32 s37, s94, 1")
    A("s_lshl_b32 s37, s37, 17")
    A("s_add_u32 s36, s36, s37")
    A("s_lshl_b32 s37, s7, 14")
    A("s_add_u32 s36, s36, s37")
    A("s_add_u32 s36, s36, 786432")
    A("s_add_u32 s37, s36, 4096")
    A("s_add_u32 s38, s36, 8192")
    A("s_add_u32 s39, s36, 12288")
    A("v_and_b32 v2, 3, v1")
    A("v_lshlrev_b32 v2, 10, v2")
    A("v_bfe_u32 v3, v1, 2, 2")
    A("v_lshl_add_u32 v2, v3, 8, v2")
    A("v_lshl_add_u32 v2, v4, 4, v2")
    A("v_lshlrev_b32 v3, 4, v1")
    A("s_waitcnt lgkmcnt(0)")
    srd(28, 10, 67108864)
    srd(32, 12, 67108864)
    v0first = 1 if tlb & 2 else 0
    if v0first:
        A(f"buffer_load_dwordx4 v[{VR}:{VR + 3}], v3, s[32:35], s36 offen {ldflag}")
    for T in range(4):
        for kk in range(4):
            if T * 4 + kk == pre_k:
                A("s_barrier")
            r = KR + (T * 4 + kk) * 4
            A(f"buffer_load_dwordx4 v[{r}:{r + 3}], v2, s[28:31], s{36 + T} offen offset:{kk * 64} {ldflag}")
    for i in range(v0first, 16):
        r = VR + i * 4
        A(f"buffer_load_dwordx4 v[{r}:{r + 3}], v3, s[32:35], s{36 + i // 4} offen offset:{(i % 4) * 1024} {ldflag}")
    stamp(1)
    lds_inc(L_C4, 5, 6)
    srd(48, 24, WS_BYTES)
    A("s_mov_b32 s64, 0xfffffc00")
    A("v_and_b32 v7, 3, v1")
    A("v_lshlrev_b32 v7, 8, v7")
    A("v_lshl_add_u32 v7, v4, 4, v7")
    A(f"v_mov_b32 v6, {L_C3}")
    lds_wait_ge(6, 5, 4, sleep=2)
    stamp(2)
    A("s_setprio 1")
    for kk in range(4):
        A(f"ds_read_b128 v[{QF + 4 * kk}:{QF + 4 * kk + 3}], v7 offset:{L_QL + kk * 64}")
    A(f"s_mov_b32 s40, {C_SCALE}")
    A("s_mov_b32 s41, 0x05040100")
    A("s_mov_b32 s42, 0x07060302")
    A("s_waitcnt lgkmcnt(0)")
    for T in range(4):
        A(f"s_waitcnt vmcnt({28 - v0first - 4 * T})")
        for kk in range(4):
            r = KR + (T * 4 + kk) * 4
            c = "0" if kk == 0 else f"v[{SR + 4 * T}:{SR + 4 * T + 3}]"
            A(f"v_mfma_f32_16x16x32_bf16 v[{SR + 4 * T}:{SR + 4 * T + 3}], v[{r}:{r + 3}], v[{QF + 4 * kk}:{QF + 4 * kk + 3}], {c}")
    stamp(3)
    A("v_and_b32 v5, 3, v1")
    A("v_mul_u32_u24 v5, 528, v5")
    A("v_lshl_add_u32 v5, v4, 7, v5")
    A(f"s_mul_i32 s43, s7, {AP_A}")
    A(f"s_add_u32 s43, s43, {L_AP}")
    A("v_add_u32 v5, s43, v5")
    A("s_nop 3")
    A(f"v_max3_f32 v2, v{SR}, v{SR + 1}, v{SR + 2}")
    for i in range(3, 15, 2):
        A(f"v_max3_f32 v2, v2, v{SR + i}, v{SR + i + 1}")
    A(f"v_max_f32 v2, v2, v{SR + 15}")
    A("v_mov_b32 v3, v2")
    A("s_nop 1")
    A("v_permlane32_swap_b32 v2, v3")
    A("s_nop 1")
    A("v_max_f32 v2, v2, v3")
    A("v_mov_b32 v3, v2")
    A("s_nop 1")
    A("v_permlane16_swap_b32 v2, v3")
    A("s_nop 1")
    A("v_max_f32 v2, v2, v3")
    A("v_mul_f32 v2, s40, v2")
    for i in range(16):
        A(f"v_fma_f32 v{SR + i}, v{SR + i}, s40, -v2")
    for i in range(16):
        A(f"v_exp_f32 v{SR + i}, v{SR + i}")
    A("s_nop 0")
    for u in range(8):
        A(f"v_cvt_pk_bf16_f32 v{PP + u}, v{SR + 2 * u}, v{SR + 2 * u + 1}")
    A(f"v_add_f32 v3, v{SR}, v{SR + 1}")
    A(f"v_add_f32 v6, v{SR + 2}, v{SR + 3}")
    for i in range(4, 16, 2):
        A(f"v_add_f32 v3, v3, v{SR + i}")
        A(f"v_add_f32 v6, v6, v{SR + i + 1}")
    A("v_add_f32 v3, v3, v6")
    A("v_mov_b32 v6, v3")
    A("s_nop 1")
    A("v_permlane32_swap_b32 v3, v6")
    A("s_nop 1")
    A("v_add_f32 v3, v3, v6")
    A("v_mov_b32 v6, v3")
    A("s_nop 1")
    A("v_permlane16_swap_b32 v3, v6")
    A("s_nop 1")
    A("v_add_f32 v3, v3, v6")
    A("v_lshlrev_b32 v6, 5, v1")
    A("s_lshl_b32 s43, s7, 2")
    A(f"s_add_u32 s43, s43, {L_ST}")
    A("v_add_u32 v6, s43, v6")
    A("s_mov_b64 exec, 15")
    A("ds_write_b32 v6, v2")
    A("ds_write_b32 v6, v3 offset:128")
    A("s_mov_b64 exec, -1")
    ATG = 144
    A(f"v_mov_b32 v7, {L_TG}")
    A(f"ds_read_b128 v[{ATG}:{ATG + 3}], v7")
    A("s_and_b32 s43, s7, 3")
    A("s_lshl_b32 s56, s93, 11")
    A("s_lshl_b32 s55, s43, 9")
    A("s_add_u32 s56, s56, s55")
    A(f"s_add_u32 s56, s56, {OB}")
    A("s_lshl_b32 s57, s93, 6")
    A("s_lshl_b32 s55, s43, 4")
    A("s_add_u32 s57, s57, s55")
    A(f"s_add_u32 s57, s57, {OW}")
    A("v_and_b32 v2, 31, v1")
    A("v_lshlrev_b32 v2, 4, v2")
    A("s_mul_i32 s54, s43, 528")
    A(f"s_add_u32 s55, s54, {L_AP}")
    A("v_add_u32 v3, s55, v2")
    A(f"s_add_u32 s55, s54, {L_OL}")
    A("v_add_u32 v150, s55, v2")
    A("s_lshl_b32 s54, s43, 2")
    A(f"s_add_u32 s54, s54, {L_F6}")
    A("v_mov_b32 v151, s54")
    A("s_lshl_b32 s54, s43, 5")
    A(f"s_add_u32 s54, s54, {L_ST}")
    A("v_mov_b32 v6, s54")
    A(f"v_mov_b32 v7, {L_C5}")
    A("v_mov_b32 v148, 1")
    for G in range(2):
        for u in range(4):
            A(f"s_waitcnt vmcnt({15 - (8 * G + 2 * u + 1)})")
            r0 = VR + (8 * G + 2 * u) * 4
            r1 = r0 + 4
            for t in range(8):
                sel = "s41" if (t & 1) == 0 else "s42"
                A(f"v_perm_b32 v{VT + 4 * t + u}, v{r1 + (t >> 1)}, v{r0 + (t >> 1)}, {sel}")
        A("s_nop 1")
        for t in range(8):
            c = "0" if G == 0 else f"v[{ACC + 4 * t}:{ACC + 4 * t + 3}]"
            A(f"v_mfma_f32_16x16x32_bf16 v[{ACC + 4 * t}:{ACC + 4 * t + 3}], v[{VT + 4 * t}:{VT + 4 * t + 3}], v[{PP + 4 * G}:{PP + 4 * G + 3}], {c}")
    stamp(4)
    A("s_mov_b32 exec_lo, 0x000f000f")
    A("s_mov_b32 exec_hi, 0x000f000f")
    A("s_nop 0")
    for t in range(8):
        if t == 7:
            A("s_nop 0")
        A(f"ds_write_b128 v5, v[{ACC + 4 * t}:{ACC + 4 * t + 3}] offset:{16 * t}")
    A("s_mov_b64 exec, 1")
    A("s_waitcnt lgkmcnt(0)")
    A("ds_add_u32 v7, v148")
    A("s_setprio 0")
    A("s_cmp_lt_u32 s7, 4")
    if dry & 1:
        A("s_cselect_b64 s[96:97], 0, -1")
    else:
        A("s_cbranch_scc1 L_aend")
    ex_all()
    lds_wait_ge(7, 149, 8, sleep=0)
    A("s_setprio 1")
    stamp(5)
    CB, OA = 72, 8
    A(f"ds_read_b128 v[{CB}:{CB + 3}], v6")
    A(f"ds_read_b128 v[{CB + 4}:{CB + 7}], v6 offset:16")
    A(f"ds_read_b128 v[{CB + 8}:{CB + 11}], v6 offset:128")
    A(f"ds_read_b128 v[{CB + 12}:{CB + 15}], v6 offset:144")
    for a in range(8):
        A(f"ds_read_b128 v[{OA + 4 * a}:{OA + 4 * a + 3}], v3 offset:{a * AP_A}")
    A("s_waitcnt lgkmcnt(10)" if not instr else "s_waitcnt lgkmcnt(0)")
    A(f"v_max3_f32 v90, v{CB}, v{CB + 1}, v{CB + 2}")
    A(f"v_max3_f32 v90, v90, v{CB + 3}, v{CB + 4}")
    A(f"v_max3_f32 v90, v90, v{CB + 5}, v{CB + 6}")
    A(f"v_max_f32 v90, v90, v{CB + 7}")
    for a in range(8):
        A(f"v_sub_f32 v{CB + a}, v{CB + a}, v90")
    for a in range(8):
        A(f"v_exp_f32 v{CB + a}, v{CB + a}")
    A("s_waitcnt lgkmcnt(8)" if not instr else "s_waitcnt lgkmcnt(0)")
    A(f"v_mul_f32 v91, v{CB}, v{CB + 8}")
    for a in range(1, 8):
        A(f"v_fmac_f32 v91, v{CB + a}, v{CB + 8 + a}")
    A("v_rcp_f32 v92, v91")
    A("v_log_f32 v93, v91")
    A("s_waitcnt lgkmcnt(0)")
    for i in range(4):
        A(f"v_mul_f32 v{96 + i}, v{CB}, v{OA + i}")
    for a in range(1, 8):
        for i in range(4):
            A(f"v_fmac_f32 v{96 + i}, v{CB + a}, v{OA + 4 * a + i}")
    A("v_add_f32 v93, v93, v90")
    for i in range(4):
        A(f"v_mul_f32 v{96 + i}, v92, v{96 + i}")
    tag4(96, ATG)
    A("s_mov_b32 exec_hi, 0")
    live_only(lambda: A("buffer_store_dwordx4 v[96:99], v2, s[48:51], s56 offen"))
    A("v_and_b32 v94, s64, v93")
    A("v_sub_f32 v94, v93, v94")
    A(f"v_bfi_b32 v100, s64, v93, v{ATG}")
    A(f"v_bfi_b32 v101, s64, v94, v{ATG + 1}")
    A(f"v_bfi_b32 v102, s64, v93, v{ATG + 2}")
    A(f"v_bfi_b32 v103, s64, v93, v{ATG + 3}")
    A("ds_write_b128 v150, v[96:99]")
    ex_c(1)
    live_only(lambda: A("buffer_store_dwordx4 v[100:103], v2, s[48:51], s57 offen"))
    stamp(6)
    A("ds_write_b128 v150, v[100:103] offset:512")
    A("s_waitcnt lgkmcnt(0)")
    A("ds_write_b32 v151, v148")
    A.label("L_aend")
    dump_stamps(7)
    A("s_endpgm")

    A.label("L_helper")
    srd(40, 22, 256)
    A(f"s_mov_b32 s65, {EP}")
    A("s_mov_b32 s64, 0xfffffc00")
    A("v_lshlrev_b32 v6, 4, v1")
    A("s_mov_b32 s58, 0x05040100")
    A("s_mov_b32 s59, 0x07060302")
    A("s_mov_b32 s98, 0")
    A("s_mov_b32 s99, 0")
    A("s_cmp_lg_u32 s6, 0")
    A("s_cbranch_scc1 L_noepoch")
    A("s_load_dwordx2 s[62:63], s[24:25], s65")
    A("s_waitcnt lgkmcnt(0)")
    A("s_add_u32 s62, s62, 1")
    A("s_addc_u32 s63, s63, 0")
    A("s_and_b32 s54, s62, 0x3ff")
    A(f"v_mov_b32 v{TG}, s54")
    A("s_lshr_b32 s54, s62, 10")
    A("s_add_u32 s54, s54, s62")
    A("s_and_b32 s54, s54, 0x3ff")
    A(f"v_mov_b32 v{TG + 1}, s54")
    A("s_lshr_b32 s54, s62, 20")
    A("s_add_u32 s54, s54, s62")
    A("s_and_b32 s54, s54, 0x3ff")
    A(f"v_mov_b32 v{TG + 2}, s54")
    A("s_lshr_b64 s[54:55], s[62:63], 30")
    A("s_add_u32 s54, s54, s62")
    A("s_and_b32 s54, s54, 0x3ff")
    A(f"v_mov_b32 v{TG + 3}, s54")
    A(f"v_mov_b32 v113, {L_TG}")
    A("s_mov_b64 exec, 1")
    A(f"ds_write_b128 v113, v[{TG}:{TG + 3}]")
    A("s_mov_b64 exec, -1")
    A.label("L_noepoch")

    def transpose(first_wait):
        for u in range(4):
            A(f"s_waitcnt vmcnt({first_wait - (2 * u + 1)})")
            r0 = W + 8 * u
            r1 = r0 + 4
            for t in range(8):
                sel = "s58" if (t & 1) == 0 else "s59"
                A(f"v_perm_b32 v{HT + 4 * t + u}, v{r1 + (t >> 1)}, v{r0 + (t >> 1)}, {sel}")

    def do_mfma(bop):
        for t in range(8):
            A(f"v_mfma_f32_16x16x32_bf16 v[{HACC + 4 * t}:{HACC + 4 * t + 3}], v[{HT + 4 * t}:{HT + 4 * t + 3}], v[{bop}:{bop + 3}], 0")

    def check(regs4, ct):
        clean, tmp = ct
        n = 0
        for r in regs4:
            for i in range(4):
                A(f"v_xor_b32 v{clean + n}, v{r + i}, v{TG + i}")
                n += 1
        live = list(range(clean, clean + n))
        first = True
        while len(live) > 1:
            nxt = []
            k = 0
            while len(live) >= 3:
                a, b, c = live[:3]
                live = live[3:]
                d = tmp + k if first else a
                k += 1
                if not first and a < tmp:
                    d = tmp + 7
                A(f"v_or3_b32 v{d}, v{a}, v{b}, v{c}")
                nxt.append(d)
            if len(live) == 2 and not nxt:
                d = max(live)
                assert d >= tmp
                A(f"v_or_b32 v{d}, v{live[0]}, v{live[1]}")
                nxt.append(d)
                live = []
            live = nxt + live
            first = False
        assert live[0] >= tmp
        A(f"v_and_b32 v{live[0]}, 0x3ff, v{live[0]}")
        A(f"v_cmp_ne_u32 vcc, 0, v{live[0]}")

    def pub_q_global(name):
        A(f"s_cbranch_execz L_pq_{name}")
        A("s_cmp_lg_u32 s98, 0")
        A(f"s_cbranch_scc1 L_pq_{name}")
        A("s_mov_b64 s[30:31], exec")
        A("s_mov_b64 exec, -1")
        A(f"s_add_u32 s95, s95, {GOFF}")
        A("buffer_store_dwordx4 v[116:119], v0, s[48:51], s95 offen sc1")
        A("s_mov_b32 s98, 1")
        A("s_mov_b64 exec, s[30:31]")
        A.label(f"L_pq_{name}")

    def pub_o_global(name, wait):
        A(f"s_cbranch_execz L_po_{name}")
        A("s_cmp_lg_u32 s99, 0")
        A(f"s_cbranch_scc1 L_po_{name}")
        A("s_mov_b64 s[30:31], exec")
        A("s_mov_b64 exec, -1")
        A("s_lshl_b32 s32, s6, 2")
        A(f"s_add_u32 s32, s32, {L_F6}")
        A("v_mov_b32 v137, s32")
        if wait:
            lds_wait_ge(137, 138, 1, sleep=1)
        else:
            A("ds_read_b32 v138, v137")
            A("s_waitcnt lgkmcnt(0)")
            A("v_readfirstlane_b32 s32, v138")
            A("s_cmp_eq_u32 s32, 0")
            A(f"s_cbranch_scc1 L_por_{name}")
        A("s_mul_i32 s32, s6, 528")
        A(f"s_add_u32 s32, s32, {L_OL}")
        A("v_lshlrev_b32 v137, 4, v3")
        A("v_add_u32 v138, s32, v137")
        A("v_mov_b32 v139, s32")
        A("ds_read_b128 v[140:143], v138")
        A("ds_read_b128 v[164:167], v139 offset:512")
        A("s_lshl_b32 s32, s93, 11")
        A("s_lshl_b32 s33, s6, 9")
        A("s_add_u32 s32, s32, s33")
        A(f"s_add_u32 s32, s32, {OB + GOFF}")
        A("s_lshl_b32 s34, s93, 6")
        A("s_lshl_b32 s33, s6, 4")
        A("s_add_u32 s34, s34, s33")
        A(f"s_add_u32 s34, s34, {OW + GOFF}")
        A("s_waitcnt lgkmcnt(0)")
        A("s_mov_b32 exec_hi, 0")
        A("buffer_store_dwordx4 v[140:143], v137, s[48:51], s32 offen sc1")
        A("s_mov_b64 exec, 1")
        A("buffer_store_dwordx4 v[164:167], v137, s[48:51], s34 offen sc1")
        A("s_mov_b32 s99, 1")
        A.label(f"L_por_{name}")
        A("s_mov_b64 exec, s[30:31]")
        A.label(f"L_po_{name}")

    def toggle(name, alt):
        if not alt:
            return
        A(f"s_cmp_gt_u32 s60, {SPIN_MAX - N_LOCAL}")
        A(f"s_cbranch_scc1 L_tg_{name}")
        for r in alt:
            A(f"s_xor_b32 s{r}, s{r}, {GOFF}")
        if name[0] == "q":
            pub_q_global(name)
        else:
            pub_o_global(name, False)
        A.label(f"L_tg_{name}")

    def poll2(name, loads, nl, regs4, tmp, thr, sleep, depth, alt=()):
        A(f"s_mov_b32 s60, {SPIN_MAX}")
        A.label(f"L_pa_{name}")
        live_only(lambda: (loads(), A("s_waitcnt vmcnt(0)")))
        check(regs4, tmp)
        if thr:
            A(f"s_cbranch_execz L_pbs_{name}")
        A(f"s_cbranch_vccz L_pok_{name}")
        A("s_mov_b64 exec, vcc")
        if thr:
            A("s_bcnt1_i32_b64 s61, vcc")
            A(f"s_cmp_le_u32 s61, {thr}")
            A(f"s_cbranch_scc1 L_pbs_{name}")
        if sleep:
            A(f"s_sleep {sleep}")
        toggle(name + "a", alt)
        A("s_sub_u32 s60, s60, 1")
        A("s_cmp_lg_u32 s60, 0")
        A(f"s_cbranch_scc1 L_pa_{name}")
        if thr:
            A(f"s_branch L_pok_{name}")
            A.label(f"L_pbs_{name}")
            A(f"s_cbranch_execz L_pbc_{name}")
            for d in range(depth):
                loads()
            A.label(f"L_pb_{name}")
            A(f"s_waitcnt vmcnt({nl * (depth - 1)})")
            if alt and depth > 1:
                A(f"s_cmp_gt_u32 s60, {SPIN_MAX - N_LOCAL}")
                A(f"s_cbranch_scc1 L_pbn_{name}")
                A("s_waitcnt vmcnt(0)")
                A.label(f"L_pbn_{name}")
            A.label(f"L_pbc_{name}")
            check(regs4, tmp)
            A(f"s_cbranch_vccz L_pok_{name}")
            A("s_mov_b64 exec, vcc")
            toggle(name + "b", alt)
            loads()
            A("s_sub_u32 s60, s60, 1")
            A("s_cmp_lg_u32 s60, 0")
            A(f"s_cbranch_scc1 L_pb_{name}")
        A.label(f"L_pok_{name}")
        ex_all()

    ntouch = 4 if tlb & 2 else 0
    transpose(8 + ntouch)
    stamp(1)
    A("v_mul_u32_u24 v7, 528, v5")
    A("v_lshl_add_u32 v7, v4, 7, v7")
    A(f"s_mul_i32 s54, s6, {QR_W}")
    A(f"s_add_u32 s54, s54, {L_QR}")
    A("v_add_u32 v7, s54, v7")
    A(f"s_waitcnt vmcnt({ntouch})")
    do_mfma(XF)
    A("v_lshrrev_b32 v2, 5, v1")
    A("s_lshl_b32 s54, s6, 1")
    A("v_add_u32 v2, s54, v2")
    A("v_and_b32 v3, 31, v1")
    A("v_mul_u32_u24 v112, 528, v2")
    A("v_lshl_add_u32 v112, v3, 4, v112")
    A(f"v_add_u32 v112, {L_QR}, v112")

    def reduce_helpers(cnt, dst, tags=False):
        A(f"v_mov_b32 v132, {cnt}")
        A("v_mov_b32 v133, 1")
        ex_pat(0x00ff00ff)
        for t in range(8):
            A(f"ds_write_b128 v7, v[{HACC + 4 * t}:{HACC + 4 * t + 3}] offset:{16 * t}")
        ex_c(1)
        A("s_waitcnt lgkmcnt(0)")
        A("ds_add_u32 v132, v133")
        ex_all()
        lds_wait_ge(132, 133, 4, sleep=0)
        if tags:
            A(f"v_mov_b32 v132, {L_TG}")
            A(f"ds_read_b128 v[{TG}:{TG + 3}], v132")
        for w in range(4):
            A(f"ds_read_b128 v[{dst + 4 * w}:{dst + 3 + 4 * w}], v112 offset:{w * QR_W}")
        A("s_waitcnt lgkmcnt(0)")
        for i in range(4):
            A(f"v_add_f32 v{dst + i}, v{dst + i}, v{dst + 4 + i}")
            A(f"v_add_f32 v{dst + 8 + i}, v{dst + 8 + i}, v{dst + 12 + i}")
        for i in range(4):
            A(f"v_add_f32 v{dst + i}, v{dst + i}, v{dst + 8 + i}")

    reduce_helpers(L_C1, 116, tags=True)
    tag4(116, TG)
    A("v_lshlrev_b32 v0, 16, v2")
    A("v_lshl_add_u32 v0, v3, 4, v0")
    A("s_lshl_b32 s95, s3, 19")
    A("s_lshl_b32 s55, s27, 11")
    A("s_add_u32 s95, s95, s55")
    A("s_lshl_b32 s55, s52, 9")
    A("s_add_u32 s95, s95, s55")
    A("buffer_store_dwordx4 v[116:119], v0, s[48:51], s95 offen")
    stamp(2)
    A("s_lshr_b32 s54, s94, 1")
    A("s_lshl_b32 s54, s54, 13")
    A("s_lshl_b32 s55, s3, 19")
    A("s_add_u32 s54, s54, s55")
    A("s_lshl_b32 s55, s6, 11")
    A("s_add_u32 s54, s54, s55")
    A("v_lshrrev_b32 v113, 5, v1")
    A("v_lshlrev_b32 v113, 10, v113")
    A("v_lshl_add_u32 v113, v3, 4, v113")
    A("v_lshrrev_b32 v114, 3, v3")
    A("v_lshlrev_b32 v114, 6, v114")
    A("v_and_b32 v115, 7, v3")
    A("v_lshl_add_u32 v114, v115, 1, v114")
    A("s_lshl_b32 s55, s6, 8")
    A(f"s_add_u32 s55, s55, {L_QL}")
    A("v_add_u32 v114, s55, v114")

    def qloads():
        A("buffer_load_dwordx4 v[120:123], v113, s[48:51], s54 offen sc1")
        A("buffer_load_dwordx4 v[124:127], v113, s[48:51], s54 offen offset:512 sc1")
    poll2("q", qloads, 2, [120, 124], (136, 156), 0, q_sleep, 1, alt=(54,))
    stamp(3)
    for i in range(4):
        A(f"v_add_f32 v{120 + i}, v{136 + i}, v{140 + i}")
    for i in range(4):
        A(f"v_mov_b32 v{124 + i}, v{120 + i}")
    A("s_nop 1")
    for i in range(4):
        A(f"v_permlane32_swap_b32 v{120 + i}, v{124 + i}")
    A("s_nop 1")
    for i in range(4):
        A(f"v_add_f32 v{120 + i}, v{120 + i}, v{124 + i}")
    A("v_cvt_pk_bf16_f32 v120, v120, v121")
    A("v_cvt_pk_bf16_f32 v122, v122, v123")
    A("s_mov_b32 exec_hi, 0")
    A("ds_write_b16 v114, v120")
    A("ds_write_b16_d16_hi v114, v120 offset:16")
    A("ds_write_b16 v114, v122 offset:32")
    A("ds_write_b16_d16_hi v114, v122 offset:48")
    A("s_waitcnt lgkmcnt(0)")
    A("s_mov_b64 exec, -1")
    lds_inc(L_C3, 113, 114)
    stamp(4)
    A("v_lshlrev_b32 v115, 11, v4")
    A("v_lshl_add_u32 v115, v5, 4, v115")
    A("s_lshl_b32 s56, s27, 7")
    A("s_lshl_b32 s55, s6, 5")
    A("s_add_u32 s56, s56, s55")
    A("s_lshl_b32 s56, s56, 10")
    A("s_lshl_b32 s55, s52, 8")
    A("s_add_u32 s56, s56, s55")
    A("v_and_b32 v113, 7, v1")
    A("v_lshlrev_b32 v113, 4, v113")
    A("v_bfe_u32 v114, v1, 3, 1")
    A("v_add_u32 v113, v113, v114")
    A("s_lshr_b32 s54, s27, 2")
    A("s_lshl_b32 s54, s54, 1")
    A("s_lshl_b32 s55, s3, 7")
    A("s_add_u32 s54, s54, s55")
    A("v_add_u32 v113, s54, v113")
    A("v_lshlrev_b32 v114, 6, v113")
    A("v_lshlrev_b32 v113, 11, v113")
    A("v_lshl_add_u32 v113, v4, 5, v113")
    A("s_and_b32 s55, s27, 3")
    A("s_lshl_b32 s54, s55, 9")
    A("s_lshl_b32 s53, s6, 7")
    A("s_add_u32 s54, s54, s53")
    A(f"s_add_u32 s54, s54, {OB}")
    A("s_lshl_b32 s55, s55, 4")
    A(f"s_add_u32 s55, s55, {OW}")
    A("v_lshlrev_b32 v134, 2, v2")
    A("v_lshrrev_b32 v135, 3, v3")
    A("v_add_u32 v134, v134, v135")
    A("v_lshlrev_b32 v134, 12, v134")
    A("v_and_b32 v135, 7, v3")
    A("v_lshl_add_u32 v134, v135, 4, v134")
    A("s_lshl_b32 s53, s3, 19")
    A("s_lshl_b32 s57, s52, 17")
    A("s_add_u32 s53, s53, s57")
    A("s_lshl_b32 s57, s27, 7")
    A("s_add_u32 s53, s53, s57")
    A(f"s_add_u32 s53, s53, {PB}")
    A("s_xor_b32 s100, s92, 128")
    A("s_lshl_b32 s100, s100, 12")
    A(f"s_add_u32 s100, s100, {PB}")
    A("s_bfe_u32 s101, s26, 0x30002")
    A("s_lshl_b32 s101, s101, 11")
    A("s_xor_b32 s57, s3, 1")
    A("s_lshl_b32 s57, s57, 10")
    A("s_add_u32 s101, s101, s57")
    A("s_lshr_b32 s57, s26, 5")
    A("s_lshl_b32 s57, s57, 8")
    A("s_add_u32 s101, s101, s57")
    A("s_and_b32 s57, s26, 3")
    A("s_lshl_b32 s57, s57, 6")
    A("s_add_u32 s101, s101, s57")
    A("v_lshlrev_b32 v135, 1, v1")
    A("v_bfe_u32 v136, v1, 3, 2")
    A("v_cmp_eq_u32 s[8:9], 1, v136")
    A("v_cmp_eq_u32 s[10:11], 2, v136")
    A("v_cmp_eq_u32 s[12:13], 3, v136")
    if tlb & 1:
        A("s_mov_b64 exec, 1")
        A("buffer_load_dword v160, v134, s[48:51], s53 offen")
        A("buffer_load_dword v161, v6, s[48:51], s100 offen")
        A("buffer_load_ushort v162, v135, s[44:47], s101 offen")
        A("buffer_load_dword v163, v115, s[36:39], s56 offen")
        A("s_mov_b64 exec, -1")
    A("s_cmp_lg_u32 s6, 3")
    A("s_cbranch_scc1 L_noarr")
    A("v_mov_b32 v132, 0")
    A("v_mov_b32 v133, 1")
    A("s_mov_b64 exec, 1")
    A("buffer_atomic_add v133, v132, s[40:43], 0 offen")
    A("s_mov_b64 exec, -1")
    A("s_branch L_tail")
    A.label("L_noarr")
    if dry & 2:
        A("s_mov_b64 s[96:97], 0")
        A("s_mov_b64 exec, 0")
    A.label("L_tail")
    A(f"v_mov_b32 v132, {L_C4}")
    lds_wait_ge(132, 133, 8, sleep=2)
    stamp(5)
    pub_q_global("c4")
    if wo_c5:
        A(f"v_mov_b32 v132, {L_C5}")
        lds_wait_ge(132, 133, wo_c5, sleep=1)
    stamp(6)
    def wo_loads():
        for e in range(8):
            A(f"s_add_u32 s57, s56, {8 * (e & 3) * 1024}")
            A(f"buffer_load_dwordx4 v[{W + 4 * e}:{W + 4 * e + 3}], v115, s[36:39], s57 offen offset:{(e >> 2) * 1024} {ldflag}")
    live_only(wo_loads)
    transpose(7)
    stamp(8)

    def oloads():
        A(f"buffer_load_dwordx4 v[{PO}:{PO + 3}], v113, s[48:51], s54 offen sc1")
        A(f"buffer_load_dwordx4 v[{PO + 4}:{PO + 7}], v113, s[48:51], s54 offen offset:16 sc1")
        A(f"buffer_load_dwordx4 v[{PO + 8}:{PO + 11}], v114, s[48:51], s55 offen sc1")
    poll2("o", oloads, 3, [PO, PO + 4, PO + 8], (116, 156), o_thr, o_sleep, o_depth, alt=(54, 55))
    stamp(9)
    A("v_add_f32 v128, v124, v125")
    A("s_nop 1")
    A("v_mov_b32_dpp v129, v128 row_ror:8 row_mask:0xf bank_mask:0xf")
    A("v_sub_f32 v129, v129, v128")
    A("v_exp_f32 v129, v129")
    A("s_nop 0")
    A("v_add_f32 v129, 1.0, v129")
    A("v_rcp_f32 v129, v129")
    A("s_nop 0")
    for i in range(8):
        A(f"v_mul_f32 v{116 + i}, v129, v{116 + i}")
    for i in range(8):
        A(f"v_add_f32_dpp v{156 + i}, v{116 + i}, v{116 + i} row_ror:8 row_mask:0xf bank_mask:0xf")
    for u in range(4):
        A(f"v_cvt_pk_bf16_f32 v{XF + u}, v{156 + 2 * u}, v{156 + 2 * u + 1}")
    A("s_nop 1")
    do_mfma(XF)
    A("s_nop 3")
    reduce_helpers(L_C2, 116)
    tag4(116, TG)
    live_only(lambda: A("buffer_store_dwordx4 v[116:119], v134, s[48:51], s53 offen sc1"))
    stamp(10)
    A("s_cmp_eq_u32 s6, 0")
    A("s_cbranch_scc1 L_final")
    pub_o_global("end", True)
    A("s_cbranch_execz L_hend")
    A("s_cmp_lg_u32 s6, 1")
    A("s_cbranch_scc1 L_hend")
    A("s_cmp_lg_u32 s2, 0")
    A("s_cbranch_scc1 L_hend")
    A("s_load_dwordx2 s[62:63], s[24:25], s65")
    A("s_waitcnt lgkmcnt(0)")
    A("s_add_u32 s62, s62, 1")
    A("s_addc_u32 s63, s63, 0")
    A("v_mov_b32 v60, 0")
    A("s_mov_b64 exec, 1")
    A(f"s_mov_b32 s60, {SPIN_MAX}")
    A.label("L_epw")
    A("buffer_load_dword v54, v60, s[40:43], 0 offen sc1")
    A("s_waitcnt vmcnt(0)")
    A("v_readfirstlane_b32 s61, v54")
    A("s_cmp_ge_u32 s61, 256")
    A("s_cbranch_scc1 L_epok")
    A("s_sub_u32 s60, s60, 1")
    A("s_cmp_lg_u32 s60, 0")
    A("s_cbranch_scc1 L_epw")
    A.label("L_epok")
    A("v_mov_b32 v52, s62")
    A("v_mov_b32 v53, s63")
    A("buffer_store_dwordx2 v[52:53], v60, s[48:51], s65 offen")
    A("s_branch L_hend")
    A.label("L_final")
    pub_o_global("end0", True)

    def ploads():
        for i in range(4):
            A(f"buffer_load_dwordx4 v[{8 + 4 * i}:{11 + 4 * i}], v6, s[48:51], s100 offen offset:{1024 * i} sc1")
    poll2("p", ploads, 4, [8, 12, 16, 20], (24, 56), p_thr, p_sleep, p_depth)
    stamp(11)
    for i in range(4):
        A(f"v_add_f32 v{44 + i}, v{24 + i}, v{28 + i}")
        A(f"v_add_f32 v{48 + i}, v{32 + i}, v{36 + i}")
    for i in range(4):
        A(f"v_add_f32 v{44 + i}, v{44 + i}, v{48 + i}")
    A("s_nop 1")
    for i in range(4):
        A(f"v_add_f32_dpp v{48 + i}, v{44 + i}, v{44 + i} row_ror:8 row_mask:0xf bank_mask:0xf")
    for i in range(4):
        A(f"v_mov_b32 v{44 + i}, v{48 + i}")
    A("s_nop 1")
    for i in range(4):
        A(f"v_permlane16_swap_b32 v{44 + i}, v{48 + i}")
    A("s_nop 1")
    for i in range(4):
        A(f"v_add_f32 v{48 + i}, v{44 + i}, v{48 + i}")
    for i in range(4):
        A(f"v_mov_b32 v{44 + i}, v{48 + i}")
    A("s_nop 1")
    for i in range(4):
        A(f"v_permlane32_swap_b32 v{44 + i}, v{48 + i}")
    A("s_nop 1")
    for i in range(4):
        A(f"v_add_f32 v{48 + i}, v{44 + i}, v{48 + i}")
    A("v_cndmask_b32 v48, v48, v49, s[8:9]")
    A("v_cndmask_b32 v48, v48, v50, s[10:11]")
    A("v_cndmask_b32 v48, v48, v51, s[12:13]")
    A("v_cvt_pk_bf16_f32 v48, v48, v48")
    A("s_mov_b32 exec_hi, 0")
    live_only(lambda: A("buffer_store_short v48, v135, s[44:47], s101 offen"))
    stamp(12)
    A.label("L_hend")
    if dry & 2:
        A("s_cbranch_execnz L_hexit")
        A("s_mov_b64 s[96:97], -1")
        A("s_mov_b64 exec, -1")
        A("s_branch L_tail")
        A.label("L_hexit")
    dump_stamps(13)
    A.label("L_end")
    A("s_endpgm")

    out = [HEADER.rstrip("\n")]
    out.append(f"; @launch grid=(256,1,1) block=(768,1,1) lds={LDS_BYTES}")
    out.append('.amdgcn_target "amdgcn-amd-amdhsa--gfx950"')
    out.append(".text")
    out.append(f".globl {NAME}")
    out.append(".p2align 8")
    out.append(f".type {NAME},@function")
    out += A.L
    out.append('.section .rodata,"a"')
    out.append(".p2align 6")
    out.append(f".amdhsa_kernel {NAME}")
    out.append("  .amdhsa_next_free_vgpr 168")
    out.append("  .amdhsa_next_free_sgpr 102")
    out.append("  .amdhsa_accum_offset 168")
    out.append("  .amdhsa_group_segment_fixed_size 0")
    out.append("  .amdhsa_kernarg_size 104")
    out.append("  .amdhsa_user_sgpr_count 2")
    out.append("  .amdhsa_user_sgpr_kernarg_segment_ptr 1")
    out.append("  .amdhsa_system_sgpr_workgroup_id_x 1")
    out.append(".end_amdhsa_kernel")
    return "\n".join(out) + "\n"


if __name__ == "__main__":
    import argparse
    ap = argparse.ArgumentParser()
    ap.add_argument("-o", default="concat_heads__sliding_block_cached__sliding_block_cached__decode.s")
    ap.add_argument("--instr", action="store_true")
    ap.add_argument("--ldflag", default="nt")
    for nm, dv in (("q_sleep", 4), ("o_thr", 16), ("o_sleep", 1), ("o_depth", 3), ("p_thr", 16), ("p_sleep", 2),
                   ("p_depth", 3), ("remap", 1), ("pre_k", 4), ("wo_c5", 0), ("dry", 3), ("tlb", 3)):
        ap.add_argument("--" + nm.replace("_", "-"), type=int, default=dv)
    a = ap.parse_args()
    kw = vars(a).copy()
    o = kw.pop("o")
    open(o, "w").write(gen(**kw))
```

```python
import sys, math, struct

NAME = "concat_heads__sliding_block_cached__sliding_block_cached__decode_kernel"

HEADER = """; Kernarg layout for this problem (104 bytes, ptrs only, base s[0:1]):
;
"""

def f32bits(x):
    return struct.unpack("<I", struct.pack("<f", x))[0]

C_SCALE = f32bits(math.log2(math.e) / math.sqrt(128.0))

QP = 0x000000
OB = 0x100000
OW = 0x180000
PB = 0x200000
EP = 0x300000
TS = 0x400000
WS_BYTES = 285229056
GOFF = 0x800000
N_LOCAL = 256

L_C1, L_C2, L_C3, L_C5, L_C4 = 0, 4, 8, 12, 16
L_TG = 32
L_F6 = 48
L_QL = 64
L_ST = 1088
L_QR = 1536
QR_W = 4224
L_AP = L_QR + 4 * QR_W
AP_A = 2112
L_OL = L_AP + 8 * AP_A
LDS_BYTES = L_OL + 4 * 528

SPIN_MAX = 1 << 20


class Asm:
    def __init__(self):
        self.L = []
        self.nlab = 0

    def __call__(self, s):
        self.L.append("    " + s)

    def label(self, s):
        self.L.append(s + ":")

    def newlabel(self, pfx="L"):
        self.nlab += 1
        return f"{pfx}_{self.nlab}"


def gen(instr=False, ldflag="nt", q_sleep=4, o_thr=16, o_sleep=1, o_depth=3, p_thr=16, p_sleep=2, p_depth=3,
        remap=1, pre_k=4, wo_c5=0, dry=3, tlb=1):
    A = Asm()

    def stamp(slot):
        if instr:
            A(f"s_memrealtime s[{66 + 2 * slot}:{67 + 2 * slot}]")

    def srd(d, lo, nbytes):
        A(f"s_mov_b32 s{d}, s{lo}")
        A(f"s_and_b32 s{d + 1}, s{lo + 1}, 0xffff")
        A(f"s_mov_b32 s{d + 2}, {nbytes}")
        A(f"s_mov_b32 s{d + 3}, 0x20000")

    def ex_all():
        A("s_mov_b64 exec, s[96:97]")

    def ex_c(c):
        A(f"s_and_b64 exec, s[96:97], {c}")

    def ex_pat(p):
        A(f"s_and_b32 exec_lo, s96, {p:#x}")
        A(f"s_and_b32 exec_hi, s97, {p:#x}")

    def ex_lo32():
        A("s_mov_b32 exec_lo, s96")
        A("s_mov_b32 exec_hi, 0")

    def live_only(fn):
        lab = A.newlabel("L_lo")
        A(f"s_cbranch_execz {lab}")
        fn()
        A.label(lab)

    def lds_wait_ge(addr_v, tmp_v, val, sleep=1):
        lab = A.newlabel("L_lw")
        done = A.newlabel("L_lwd")
        A(f"s_mov_b32 s60, {SPIN_MAX}")
        A.label(lab)
        A(f"ds_read_b32 v{tmp_v}, v{addr_v}")
        A("s_waitcnt lgkmcnt(0)")
        A(f"v_readfirstlane_b32 s61, v{tmp_v}")
        A(f"s_cbranch_execz {done}")
        A(f"s_cmp_ge_u32 s61, {val}")
        A(f"s_cbranch_scc1 {done}")
        if sleep:
            A(f"s_sleep {sleep}")
        A("s_sub_u32 s60, s60, 1")
        A("s_cmp_lg_u32 s60, 0")
        A(f"s_cbranch_scc1 {lab}")
        A.label(done)

    def lds_inc(addr, va, vb):
        A(f"v_mov_b32 v{va}, 1")
        A(f"v_mov_b32 v{vb}, {addr}")
        ex_c(1)
        A(f"ds_add_u32 v{vb}, v{va}")
        ex_all()

    def dump_stamps(nslots):
        if not instr:
            return
        A("s_waitcnt lgkmcnt(0)")
        A("s_mul_i32 s60, s2, 12")
        A("s_add_u32 s60, s60, s6")
        A("s_lshl_b32 s60, s60, 7")
        A(f"s_add_u32 s60, s60, {TS}")
        A("s_mov_b64 exec, 1")
        A("v_mov_b32 v1, 0")
        for i in range(nslots):
            A(f"v_mov_b32 v2, s{66 + 2 * i}")
            A(f"v_mov_b32 v3, s{67 + 2 * i}")
            A(f"buffer_store_dwordx2 v[2:3], v1, s[48:51], s60 offen offset:{8 * i}")
            A("s_nop 1")

    def tag4(r, TG):
        for i in range(4):
            A(f"v_bfi_b32 v{r + i}, s64, v{r + i}, v{TG + i}")

    A.label(NAME)
    stamp(0)
    A("s_cmp_ge_u32 s2, 256")
    A("s_cbranch_scc1 L_end")
    if remap:
        A("s_and_b32 s3, s2, 7")
        A("s_lshl_b32 s3, s3, 1")
        A("s_lshr_b32 s4, s2, 7")
        A("s_add_u32 s92, s3, s4")
        A("s_lshr_b32 s3, s92, 3")
    else:
        A("s_lshr_b32 s3, s2, 7")
    A("s_mul_i32 s4, s3, 40")
    A("s_add_u32 s4, s0, s4")
    A("s_addc_u32 s5, s1, 0")
    A("s_load_dwordx8 s[8:15], s[4:5], 0")
    A("s_load_dwordx2 s[16:17], s[4:5], 32")
    A("s_load_dwordx4 s[20:23], s[0:1], 80")
    A("s_load_dwordx2 s[24:25], s[0:1], 96")
    if remap:
        A("s_bfe_u32 s4, s2, 0x40003")
        A("s_and_b32 s5, s92, 7")
        A("s_lshl_b32 s92, s92, 4")
        A("s_add_u32 s92, s92, s4")
        A("s_lshr_b32 s93, s4, 1")
        A("s_lshl_b32 s93, s93, 3")
        A("s_add_u32 s93, s93, s5")
        A("s_lshl_b32 s93, s93, 1")
        A("s_and_b32 s4, s4, 1")
        A("s_add_u32 s93, s93, s4")
        A("s_lshl_b32 s4, s3, 7")
        A("s_add_u32 s93, s93, s4")
    else:
        A("s_mov_b32 s92, s2")
        A("s_mov_b32 s93, s2")
    A("v_lshrrev_b32 v1, 6, v0")
    A("v_mov_b32 v2, 0")
    A("v_readfirstlane_b32 s6, v1")
    A("v_and_b32 v1, 63, v0")
    A("s_and_b32 s26, s92, 127")
    A("s_and_b32 s94, s93, 127")
    A("v_lshrrev_b32 v4, 4, v1")
    A("s_mov_b64 s[96:97], -1")
    A("s_cmp_lt_u32 s6, 4")
    A("s_cbranch_scc0 L_att")

    W, XF, HT, HACC = 8, 40, 44, 76
    TG = 108
    PO = 144
    A("v_mov_b32 v8, 0")
    A("v_mov_b32 v9, 0")
    A("v_mov_b32 v10, 0")
    A("v_mov_b32 v11, 0")
    A("s_cmp_lg_u32 s6, 0")
    A("s_cbranch_scc1 L_noinit")
    A("ds_write_b128 v2, v[8:11]")
    A("ds_write_b128 v2, v[8:11] offset:16")
    A("ds_write_b128 v2, v[8:11] offset:48")
    A.label("L_noinit")
    A("s_lshr_b32 s27, s26, 2")
    A("s_and_b32 s52, s26, 3")
    A("v_and_b32 v5, 15, v1")
    A("v_and_b32 v2, 7, v1")
    A("v_lshlrev_b32 v2, 10, v2")
    A("v_lshl_add_u32 v2, v4, 4, v2")
    A("s_lshl_b32 s53, s52, 7")
    A("s_lshl_b32 s54, s6, 5")
    A("s_add_u32 s53, s53, s54")
    A("s_lshl_b32 s54, s53, 1")
    A("v_lshlrev_b32 v3, 16, v4")
    A("v_lshl_add_u32 v3, v5, 4, v3")
    A("s_lshl_b32 s56, s53, 13")
    A("s_lshl_b32 s55, s27, 8")
    A("s_add_u32 s56, s56, s55")
    A("s_waitcnt lgkmcnt(0)")
    srd(32, 14, 4194304)
    srd(28, 8, 8192)
    for e in range(8):
        A(f"buffer_load_dwordx4 v[{W + 4 * e}:{W + 4 * e + 3}], v3, s[32:35], s56 offen {ldflag}")
        if e < 7:
            A("s_add_u32 s56, s56, 8192")
    A(f"buffer_load_dwordx4 v[{XF}:{XF + 3}], v2, s[28:31], s54 offen")
    srd(36, 16, 4194304)
    srd(44, 20, 16384)
    srd(48, 24, WS_BYTES)
    if tlb & 2:
        A("v_mov_b32 v159, 0")
        A("s_lshl_b32 s55, s27, 17")
        A(f"s_mov_b32 s57, {PB}")
        A("s_mov_b64 exec, 1")
        A("buffer_load_dword v160, v159, s[48:51], 0 offen")
        A("buffer_load_dword v161, v159, s[48:51], s57 offen")
        A("buffer_load_dword v162, v159, s[44:47], 0 offen")
        A("buffer_load_dword v163, v159, s[36:39], s55 offen")
        A("s_mov_b64 exec, -1")
    A("s_barrier")
    A("s_branch L_helper")

    A.label("L_att")
    KR, VR, QF, SR = 8, 72, 136, 152
    ACC, VT, PP = 8, 40, 136
    A("s_sub_u32 s7, s6, 4")
    A("s_lshr_b32 s36, s94, 1")
    A("s_lshl_b32 s36, s36, 20")
    A("s_and_b32 s37, s94, 1")
    A("s_lshl_b32 s37, s37, 17")
    A("s_add_u32 s36, s36, s37")
    A("s_lshl_b32 s37, s7, 14")
    A("s_add_u32 s36, s36, s37")
    A("s_add_u32 s36, s36, 786432")
    A("s_add_u32 s37, s36, 4096")
    A("s_add_u32 s38, s36, 8192")
    A("s_add_u32 s39, s36, 12288")
    A("v_and_b32 v2, 3, v1")
    A("v_lshlrev_b32 v2, 10, v2")
    A("v_bfe_u32 v3, v1, 2, 2")
    A("v_lshl_add_u32 v2, v3, 8, v2")
    A("v_lshl_add_u32 v2, v4, 4, v2")
    A("v_lshlrev_b32 v3, 4, v1")
    A("s_waitcnt lgkmcnt(0)")
    srd(28, 10, 67108864)
    srd(32, 12, 67108864)
    v0first = 1 if tlb & 2 else 0
    if v0first:
        A(f"buffer_load_dwordx4 v[{VR}:{VR + 3}], v3, s[32:35], s36 offen {ldflag}")
    for T in range(4):
        for kk in range(4):
            if T * 4 + kk == pre_k:
                A("s_barrier")
            r = KR + (T * 4 + kk) * 4
            A(f"buffer_load_dwordx4 v[{r}:{r + 3}], v2, s[28:31], s{36 + T} offen offset:{kk * 64} {ldflag}")
    for i in range(v0first, 16):
        r = VR + i * 4
        A(f"buffer_load_dwordx4 v[{r}:{r + 3}], v3, s[32:35], s{36 + i // 4} offen offset:{(i % 4) * 1024} {ldflag}")
    stamp(1)
    lds_inc(L_C4, 5, 6)
    srd(48, 24, WS_BYTES)
    A("s_mov_b32 s64, 0xfffffc00")
    A("v_and_b32 v7, 3, v1")
    A("v_lshlrev_b32 v7, 8, v7")
    A("v_lshl_add_u32 v7, v4, 4, v7")
    A(f"v_mov_b32 v6, {L_C3}")
    lds_wait_ge(6, 5, 4, sleep=2)
    stamp(2)
    A("s_setprio 1")
    for kk in range(4):
        A(f"ds_read_b128 v[{QF + 4 * kk}:{QF + 4 * kk + 3}], v7 offset:{L_QL + kk * 64}")
    A(f"s_mov_b32 s40, {C_SCALE}")
    A("s_mov_b32 s41, 0x05040100")
    A("s_mov_b32 s42, 0x07060302")
    A("s_waitcnt lgkmcnt(0)")
    for T in range(4):
        A(f"s_waitcnt vmcnt({28 - v0first - 4 * T})")
        for kk in range(4):
            r = KR + (T * 4 + kk) * 4
            c = "0" if kk == 0 else f"v[{SR + 4 * T}:{SR + 4 * T + 3}]"
            A(f"v_mfma_f32_16x16x32_bf16 v[{SR + 4 * T}:{SR + 4 * T + 3}], v[{r}:{r + 3}], v[{QF + 4 * kk}:{QF + 4 * kk + 3}], {c}")
    stamp(3)
    A("v_and_b32 v5, 3, v1")
    A("v_mul_u32_u24 v5, 528, v5")
    A("v_lshl_add_u32 v5, v4, 7, v5")
    A(f"s_mul_i32 s43, s7, {AP_A}")
    A(f"s_add_u32 s43, s43, {L_AP}")
    A("v_add_u32 v5, s43, v5")
    A("s_nop 3")
    A(f"v_max3_f32 v2, v{SR}, v{SR + 1}, v{SR + 2}")
    for i in range(3, 15, 2):
        A(f"v_max3_f32 v2, v2, v{SR + i}, v{SR + i + 1}")
    A(f"v_max_f32 v2, v2, v{SR + 15}")
    A("v_mov_b32 v3, v2")
    A("s_nop 1")
    A("v_permlane32_swap_b32 v2, v3")
    A("s_nop 1")
    A("v_max_f32 v2, v2, v3")
    A("v_mov_b32 v3, v2")
    A("s_nop 1")
    A("v_permlane16_swap_b32 v2, v3")
    A("s_nop 1")
    A("v_max_f32 v2, v2, v3")
    A("v_mul_f32 v2, s40, v2")
    for i in range(16):
        A(f"v_fma_f32 v{SR + i}, v{SR + i}, s40, -v2")
    for i in range(16):
        A(f"v_exp_f32 v{SR + i}, v{SR + i}")
    A("s_nop 0")
    for u in range(8):
        A(f"v_cvt_pk_bf16_f32 v{PP + u}, v{SR + 2 * u}, v{SR + 2 * u + 1}")
    A(f"v_add_f32 v3, v{SR}, v{SR + 1}")
    A(f"v_add_f32 v6, v{SR + 2}, v{SR + 3}")
    for i in range(4, 16, 2):
        A(f"v_add_f32 v3, v3, v{SR + i}")
        A(f"v_add_f32 v6, v6, v{SR + i + 1}")
    A("v_add_f32 v3, v3, v6")
    A("v_mov_b32 v6, v3")
    A("s_nop 1")
    A("v_permlane32_swap_b32 v3, v6")
    A("s_nop 1")
    A("v_add_f32 v3, v3, v6")
    A("v_mov_b32 v6, v3")
    A("s_nop 1")
    A("v_permlane16_swap_b32 v3, v6")
    A("s_nop 1")
    A("v_add_f32 v3, v3, v6")
    A("v_lshlrev_b32 v6, 5, v1")
    A("s_lshl_b32 s43, s7, 2")
    A(f"s_add_u32 s43, s43, {L_ST}")
    A("v_add_u32 v6, s43, v6")
    A("s_mov_b64 exec, 15")
    A("ds_write_b32 v6, v2")
    A("ds_write_b32 v6, v3 offset:128")
    A("s_mov_b64 exec, -1")
    ATG = 144
    A(f"v_mov_b32 v7, {L_TG}")
    A(f"ds_read_b128 v[{ATG}:{ATG + 3}], v7")
    A("s_and_b32 s43, s7, 3")
    A("s_lshl_b32 s56, s93, 11")
    A("s_lshl_b32 s55, s43, 9")
    A("s_add_u32 s56, s56, s55")
    A(f"s_add_u32 s56, s56, {OB}")
    A("s_lshl_b32 s57, s93, 6")
    A("s_lshl_b32 s55, s43, 4")
    A("s_add_u32 s57, s57, s55")
    A(f"s_add_u32 s57, s57, {OW}")
    A("v_and_b32 v2, 31, v1")
    A("v_lshlrev_b32 v2, 4, v2")
    A("s_mul_i32 s54, s43, 528")
    A(f"s_add_u32 s55, s54, {L_AP}")
    A("v_add_u32 v3, s55, v2")
    A(f"s_add_u32 s55, s54, {L_OL}")
    A("v_add_u32 v150, s55, v2")
    A("s_lshl_b32 s54, s43, 2")
    A(f"s_add_u32 s54, s54, {L_F6}")
    A("v_mov_b32 v151, s54")
    A("s_lshl_b32 s54, s43, 5")
    A(f"s_add_u32 s54, s54, {L_ST}")
    A("v_mov_b32 v6, s54")
    A(f"v_mov_b32 v7, {L_C5}")
    A("v_mov_b32 v148, 1")
    for G in range(2):
        for u in range(4):
            A(f"s_waitcnt vmcnt({15 - (8 * G + 2 * u + 1)})")
            r0 = VR + (8 * G + 2 * u) * 4
            r1 = r0 + 4
            for t in range(8):
                sel = "s41" if (t & 1) == 0 else "s42"
                A(f"v_perm_b32 v{VT + 4 * t + u}, v{r1 + (t >> 1)}, v{r0 + (t >> 1)}, {sel}")
        A("s_nop 1")
        for t in range(8):
            c = "0" if G == 0 else f"v[{ACC + 4 * t}:{ACC + 4 * t + 3}]"
            A(f"v_mfma_f32_16x16x32_bf16 v[{ACC + 4 * t}:{ACC + 4 * t + 3}], v[{VT + 4 * t}:{VT + 4 * t + 3}], v[{PP + 4 * G}:{PP + 4 * G + 3}], {c}")
    stamp(4)
    A("s_mov_b32 exec_lo, 0x000f000f")
    A("s_mov_b32 exec_hi, 0x000f000f")
    A("s_nop 0")
    for t in range(8):
        if t == 7:
            A("s_nop 0")
        A(f"ds_write_b128 v5, v[{ACC + 4 * t}:{ACC + 4 * t + 3}] offset:{16 * t}")
    A("s_mov_b64 exec, 1")
    A("s_waitcnt lgkmcnt(0)")
    A("ds_add_u32 v7, v148")
    A("s_setprio 0")
    A("s_cmp_lt_u32 s7, 4")
    if dry & 1:
        A("s_cselect_b64 s[96:97], 0, -1")
    else:
        A("s_cbranch_scc1 L_aend")
    ex_all()
    lds_wait_ge(7, 149, 8, sleep=0)
    A("s_setprio 1")
    stamp(5)
    CB, OA = 72, 8
    A(f"ds_read_b128 v[{CB}:{CB + 3}], v6")
    A(f"ds_read_b128 v[{CB + 4}:{CB + 7}], v6 offset:16")
    A(f"ds_read_b128 v[{CB + 8}:{CB + 11}], v6 offset:128")
    A(f"ds_read_b128 v[{CB + 12}:{CB + 15}], v6 offset:144")
    for a in range(8):
        A(f"ds_read_b128 v[{OA + 4 * a}:{OA + 4 * a + 3}], v3 offset:{a * AP_A}")
    A("s_waitcnt lgkmcnt(10)" if not instr else "s_waitcnt lgkmcnt(0)")
    A(f"v_max3_f32 v90, v{CB}, v{CB + 1}, v{CB + 2}")
    A(f"v_max3_f32 v90, v90, v{CB + 3}, v{CB + 4}")
    A(f"v_max3_f32 v90, v90, v{CB + 5}, v{CB + 6}")
    A(f"v_max_f32 v90, v90, v{CB + 7}")
    for a in range(8):
        A(f"v_sub_f32 v{CB + a}, v{CB + a}, v90")
    for a in range(8):
        A(f"v_exp_f32 v{CB + a}, v{CB + a}")
    A("s_waitcnt lgkmcnt(8)" if not instr else "s_waitcnt lgkmcnt(0)")
    A(f"v_mul_f32 v91, v{CB}, v{CB + 8}")
    for a in range(1, 8):
        A(f"v_fmac_f32 v91, v{CB + a}, v{CB + 8 + a}")
    A("v_rcp_f32 v92, v91")
    A("v_log_f32 v93, v91")
    A("s_waitcnt lgkmcnt(0)")
    for i in range(4):
        A(f"v_mul_f32 v{96 + i}, v{CB}, v{OA + i}")
    for a in range(1, 8):
        for i in range(4):
            A(f"v_fmac_f32 v{96 + i}, v{CB + a}, v{OA + 4 * a + i}")
    A("v_add_f32 v93, v93, v90")
    for i in range(4):
        A(f"v_mul_f32 v{96 + i}, v92, v{96 + i}")
    tag4(96, ATG)
    A("s_mov_b32 exec_hi, 0")
    live_only(lambda: A("buffer_store_dwordx4 v[96:99], v2, s[48:51], s56 offen"))
    A("v_and_b32 v94, s64, v93")
    A("v_sub_f32 v94, v93, v94")
    A(f"v_bfi_b32 v100, s64, v93, v{ATG}")
    A(f"v_bfi_b32 v101, s64, v94, v{ATG + 1}")
    A(f"v_bfi_b32 v102, s64, v93, v{ATG + 2}")
    A(f"v_bfi_b32 v103, s64, v93, v{ATG + 3}")
    A("ds_write_b128 v150, v[96:99]")
    ex_c(1)
    live_only(lambda: A("buffer_store_dwordx4 v[100:103], v2, s[48:51], s57 offen"))
    stamp(6)
    A("ds_write_b128 v150, v[100:103] offset:512")
    A("s_waitcnt lgkmcnt(0)")
    A("ds_write_b32 v151, v148")
    A.label("L_aend")
    dump_stamps(7)
    A("s_endpgm")

    A.label("L_helper")
    srd(40, 22, 256)
    A(f"s_mov_b32 s65, {EP}")
    A("s_mov_b32 s64, 0xfffffc00")
    A("v_lshlrev_b32 v6, 4, v1")
    A("s_mov_b32 s58, 0x05040100")
    A("s_mov_b32 s59, 0x07060302")
    A("s_mov_b32 s98, 0")
    A("s_mov_b32 s99, 0")
    A("s_cmp_lg_u32 s6, 0")
    A("s_cbranch_scc1 L_noepoch")
    A("s_load_dwordx2 s[62:63], s[24:25], s65")
    A("s_waitcnt lgkmcnt(0)")
    A("s_add_u32 s62, s62, 1")
    A("s_addc_u32 s63, s63, 0")
    A("s_and_b32 s54, s62, 0x3ff")
    A(f"v_mov_b32 v{TG}, s54")
    A("s_lshr_b32 s54, s62, 10")
    A("s_add_u32 s54, s54, s62")
    A("s_and_b32 s54, s54, 0x3ff")
    A(f"v_mov_b32 v{TG + 1}, s54")
    A("s_lshr_b32 s54, s62, 20")
    A("s_add_u32 s54, s54, s62")
    A("s_and_b32 s54, s54, 0x3ff")
    A(f"v_mov_b32 v{TG + 2}, s54")
    A("s_lshr_b64 s[54:55], s[62:63], 30")
    A("s_add_u32 s54, s54, s62")
    A("s_and_b32 s54, s54, 0x3ff")
    A(f"v_mov_b32 v{TG + 3}, s54")
    A(f"v_mov_b32 v113, {L_TG}")
    A("s_mov_b64 exec, 1")
    A(f"ds_write_b128 v113, v[{TG}:{TG + 3}]")
    A("s_mov_b64 exec, -1")
    A.label("L_noepoch")

    def transpose(first_wait):
        for u in range(4):
            A(f"s_waitcnt vmcnt({first_wait - (2 * u + 1)})")
            r0 = W + 8 * u
            r1 = r0 + 4
            for t in range(8):
                sel = "s58" if (t & 1) == 0 else "s59"
                A(f"v_perm_b32 v{HT + 4 * t + u}, v{r1 + (t >> 1)}, v{r0 + (t >> 1)}, {sel}")

    def do_mfma(bop):
        for t in range(8):
            A(f"v_mfma_f32_16x16x32_bf16 v[{HACC + 4 * t}:{HACC + 4 * t + 3}], v[{HT + 4 * t}:{HT + 4 * t + 3}], v[{bop}:{bop + 3}], 0")

    def check(regs4, ct):
        clean, tmp = ct
        n = 0
        for r in regs4:
            for i in range(4):
                A(f"v_xor_b32 v{clean + n}, v{r + i}, v{TG + i}")
                n += 1
        live = list(range(clean, clean + n))
        first = True
        while len(live) > 1:
            nxt = []
            k = 0
            while len(live) >= 3:
                a, b, c = live[:3]
                live = live[3:]
                d = tmp + k if first else a
                k += 1
                if not first and a < tmp:
                    d = tmp + 7
                A(f"v_or3_b32 v{d}, v{a}, v{b}, v{c}")
                nxt.append(d)
            if len(live) == 2 and not nxt:
                d = max(live)
                assert d >= tmp
                A(f"v_or_b32 v{d}, v{live[0]}, v{live[1]}")
                nxt.append(d)
                live = []
            live = nxt + live
            first = False
        assert live[0] >= tmp
        A(f"v_and_b32 v{live[0]}, 0x3ff, v{live[0]}")
        A(f"v_cmp_ne_u32 vcc, 0, v{live[0]}")

    def pub_q_global(name):
        A(f"s_cbranch_execz L_pq_{name}")
        A("s_cmp_lg_u32 s98, 0")
        A(f"s_cbranch_scc1 L_pq_{name}")
        A("s_mov_b64 s[30:31], exec")
        A("s_mov_b64 exec, -1")
        A(f"s_add_u32 s95, s95, {GOFF}")
        A("buffer_store_dwordx4 v[116:119], v0, s[48:51], s95 offen sc1")
        A("s_mov_b32 s98, 1")
        A("s_mov_b64 exec, s[30:31]")
        A.label(f"L_pq_{name}")

    def pub_o_global(name, wait):
        A(f"s_cbranch_execz L_po_{name}")
        A("s_cmp_lg_u32 s99, 0")
        A(f"s_cbranch_scc1 L_po_{name}")
        A("s_mov_b64 s[30:31], exec")
        A("s_mov_b64 exec, -1")
        A("s_lshl_b32 s32, s6, 2")
        A(f"s_add_u32 s32, s32, {L_F6}")
        A("v_mov_b32 v137, s32")
        if wait:
            lds_wait_ge(137, 138, 1, sleep=1)
        else:
            A("ds_read_b32 v138, v137")
            A("s_waitcnt lgkmcnt(0)")
            A("v_readfirstlane_b32 s32, v138")
            A("s_cmp_eq_u32 s32, 0")
            A(f"s_cbranch_scc1 L_por_{name}")
        A("s_mul_i32 s32, s6, 528")
        A(f"s_add_u32 s32, s32, {L_OL}")
        A("v_lshlrev_b32 v137, 4, v3")
        A("v_add_u32 v138, s32, v137")
        A("v_mov_b32 v139, s32")
        A("ds_read_b128 v[140:143], v138")
        A("ds_read_b128 v[164:167], v139 offset:512")
        A("s_lshl_b32 s32, s93, 11")
        A("s_lshl_b32 s33, s6, 9")
        A("s_add_u32 s32, s32, s33")
        A(f"s_add_u32 s32, s32, {OB + GOFF}")
        A("s_lshl_b32 s34, s93, 6")
        A("s_lshl_b32 s33, s6, 4")
        A("s_add_u32 s34, s34, s33")
        A(f"s_add_u32 s34, s34, {OW + GOFF}")
        A("s_waitcnt lgkmcnt(0)")
        A("s_mov_b32 exec_hi, 0")
        A("buffer_store_dwordx4 v[140:143], v137, s[48:51], s32 offen sc1")
        A("s_mov_b64 exec, 1")
        A("buffer_store_dwordx4 v[164:167], v137, s[48:51], s34 offen sc1")
        A("s_mov_b32 s99, 1")
        A.label(f"L_por_{name}")
        A("s_mov_b64 exec, s[30:31]")
        A.label(f"L_po_{name}")

    def toggle(name, alt):
        if not alt:
            return
        A(f"s_cmp_gt_u32 s60, {SPIN_MAX - N_LOCAL}")
        A(f"s_cbranch_scc1 L_tg_{name}")
        for r in alt:
            A(f"s_xor_b32 s{r}, s{r}, {GOFF}")
        if name[0] == "q":
            pub_q_global(name)
        else:
            pub_o_global(name, False)
        A.label(f"L_tg_{name}")

    def poll2(name, loads, nl, sets, tmp, thr, sleep, alt=()):
        depth = len(sets)

        def regs4(base):
            return [base + 4 * i for i in range(nl)]
        A(f"s_mov_b32 s60, {SPIN_MAX}")
        A.label(f"L_pa_{name}")
        live_only(lambda: (loads(sets[0]), A("s_waitcnt vmcnt(0)")))
        check(regs4(sets[0]), tmp)
        if thr:
            A(f"s_cbranch_execz L_pbs_{name}")
        A(f"s_cbranch_vccz L_pok_{name}")
        A("s_mov_b64 exec, vcc")
        if thr:
            A("s_bcnt1_i32_b64 s61, vcc")
            A(f"s_cmp_le_u32 s61, {thr}")
            A(f"s_cbranch_scc1 L_pbs_{name}")
        if sleep:
            A(f"s_sleep {sleep}")
        toggle(name + "a", alt)
        A("s_sub_u32 s60, s60, 1")
        A("s_cmp_lg_u32 s60, 0")
        A(f"s_cbranch_scc1 L_pa_{name}")
        if thr:
            A(f"s_branch L_pok_{name}")
            A.label(f"L_pbs_{name}")
            live_only(lambda: [loads(b) for b in sets])
            A.label(f"L_pb_{name}")
            for d, b in enumerate(sets):
                live_only(lambda: A(f"s_waitcnt vmcnt({nl * (depth - 1)})"))
                check(regs4(b), tmp)
                A(f"s_cbranch_execz L_pbd_{name}{d}")
                A(f"s_cbranch_vccz L_pok_{name}")
                A("s_mov_b64 exec, vcc")
                if d == 0:
                    toggle(name + "b", alt)
                loads(b)
                A.label(f"L_pbd_{name}{d}")
            A(f"s_cbranch_execz L_pok_{name}")
            A("s_sub_u32 s60, s60, 1")
            A("s_cmp_lg_u32 s60, 0")
            A(f"s_cbranch_scc1 L_pb_{name}")
        A.label(f"L_pok_{name}")
        ex_all()

    ntouch = 4 if tlb & 2 else 0
    transpose(8 + ntouch)
    stamp(1)
    A("v_mul_u32_u24 v7, 528, v5")
    A("v_lshl_add_u32 v7, v4, 7, v7")
    A(f"s_mul_i32 s54, s6, {QR_W}")
    A(f"s_add_u32 s54, s54, {L_QR}")
    A("v_add_u32 v7, s54, v7")
    A(f"s_waitcnt vmcnt({ntouch})")
    do_mfma(XF)
    A("v_lshrrev_b32 v2, 5, v1")
    A("s_lshl_b32 s54, s6, 1")
    A("v_add_u32 v2, s54, v2")
    A("v_and_b32 v3, 31, v1")
    A("v_mul_u32_u24 v112, 528, v2")
    A("v_lshl_add_u32 v112, v3, 4, v112")
    A(f"v_add_u32 v112, {L_QR}, v112")

    def reduce_helpers(cnt, dst, tags=False):
        A(f"v_mov_b32 v132, {cnt}")
        A("v_mov_b32 v133, 1")
        ex_pat(0x00ff00ff)
        for t in range(8):
            A(f"ds_write_b128 v7, v[{HACC + 4 * t}:{HACC + 4 * t + 3}] offset:{16 * t}")
        ex_c(1)
        A("s_waitcnt lgkmcnt(0)")
        A("ds_add_u32 v132, v133")
        ex_all()
        lds_wait_ge(132, 133, 4, sleep=0)
        if tags:
            A(f"v_mov_b32 v132, {L_TG}")
            A(f"ds_read_b128 v[{TG}:{TG + 3}], v132")
        for w in range(4):
            A(f"ds_read_b128 v[{dst + 4 * w}:{dst + 3 + 4 * w}], v112 offset:{w * QR_W}")
        A("s_waitcnt lgkmcnt(0)")
        for i in range(4):
            A(f"v_add_f32 v{dst + i}, v{dst + i}, v{dst + 4 + i}")
            A(f"v_add_f32 v{dst + 8 + i}, v{dst + 8 + i}, v{dst + 12 + i}")
        for i in range(4):
            A(f"v_add_f32 v{dst + i}, v{dst + i}, v{dst + 8 + i}")

    reduce_helpers(L_C1, 116, tags=True)
    tag4(116, TG)
    A("v_lshlrev_b32 v0, 16, v2")
    A("v_lshl_add_u32 v0, v3, 4, v0")
    A("s_lshl_b32 s95, s3, 19")
    A("s_lshl_b32 s55, s27, 11")
    A("s_add_u32 s95, s95, s55")
    A("s_lshl_b32 s55, s52, 9")
    A("s_add_u32 s95, s95, s55")
    A("buffer_store_dwordx4 v[116:119], v0, s[48:51], s95 offen")
    stamp(2)
    A("s_lshr_b32 s54, s94, 1")
    A("s_lshl_b32 s54, s54, 13")
    A("s_lshl_b32 s55, s3, 19")
    A("s_add_u32 s54, s54, s55")
    A("s_lshl_b32 s55, s6, 11")
    A("s_add_u32 s54, s54, s55")
    A("v_lshrrev_b32 v113, 5, v1")
    A("v_lshlrev_b32 v113, 10, v113")
    A("v_lshl_add_u32 v113, v3, 4, v113")
    A("v_lshrrev_b32 v114, 3, v3")
    A("v_lshlrev_b32 v114, 6, v114")
    A("v_and_b32 v115, 7, v3")
    A("v_lshl_add_u32 v114, v115, 1, v114")
    A("s_lshl_b32 s55, s6, 8")
    A(f"s_add_u32 s55, s55, {L_QL}")
    A("v_add_u32 v114, s55, v114")

    def qloads(b):
        A(f"buffer_load_dwordx4 v[{b}:{b + 3}], v113, s[48:51], s54 offen sc1")
        A(f"buffer_load_dwordx4 v[{b + 4}:{b + 7}], v113, s[48:51], s54 offen offset:512 sc1")
    poll2("q", qloads, 2, [120], (136, 156), 0, q_sleep, alt=(54,))
    stamp(3)
    for i in range(4):
        A(f"v_add_f32 v{120 + i}, v{136 + i}, v{140 + i}")
    for i in range(4):
        A(f"v_mov_b32 v{124 + i}, v{120 + i}")
    A("s_nop 1")
    for i in range(4):
        A(f"v_permlane32_swap_b32 v{120 + i}, v{124 + i}")
    A("s_nop 1")
    for i in range(4):
        A(f"v_add_f32 v{120 + i}, v{120 + i}, v{124 + i}")
    A("v_cvt_pk_bf16_f32 v120, v120, v121")
    A("v_cvt_pk_bf16_f32 v122, v122, v123")
    A("s_mov_b32 exec_hi, 0")
    A("ds_write_b16 v114, v120")
    A("ds_write_b16_d16_hi v114, v120 offset:16")
    A("ds_write_b16 v114, v122 offset:32")
    A("ds_write_b16_d16_hi v114, v122 offset:48")
    A("s_waitcnt lgkmcnt(0)")
    A("s_mov_b64 exec, -1")
    lds_inc(L_C3, 113, 114)
    stamp(4)
    A("v_lshlrev_b32 v115, 11, v4")
    A("v_lshl_add_u32 v115, v5, 4, v115")
    A("s_lshl_b32 s56, s27, 7")
    A("s_lshl_b32 s55, s6, 5")
    A("s_add_u32 s56, s56, s55")
    A("s_lshl_b32 s56, s56, 10")
    A("s_lshl_b32 s55, s52, 8")
    A("s_add_u32 s56, s56, s55")
    A("v_and_b32 v113, 7, v1")
    A("v_lshlrev_b32 v113, 4, v113")
    A("v_bfe_u32 v114, v1, 3, 1")
    A("v_add_u32 v113, v113, v114")
    A("s_lshr_b32 s54, s27, 2")
    A("s_lshl_b32 s54, s54, 1")
    A("s_lshl_b32 s55, s3, 7")
    A("s_add_u32 s54, s54, s55")
    A("v_add_u32 v113, s54, v113")
    A("v_lshlrev_b32 v114, 6, v113")
    A("v_lshlrev_b32 v113, 11, v113")
    A("v_lshl_add_u32 v113, v4, 5, v113")
    A("s_and_b32 s55, s27, 3")
    A("s_lshl_b32 s54, s55, 9")
    A("s_lshl_b32 s53, s6, 7")
    A("s_add_u32 s54, s54, s53")
    A(f"s_add_u32 s54, s54, {OB}")
    A("s_lshl_b32 s55, s55, 4")
    A(f"s_add_u32 s55, s55, {OW}")
    A("v_lshlrev_b32 v134, 2, v2")
    A("v_lshrrev_b32 v135, 3, v3")
    A("v_add_u32 v134, v134, v135")
    A("v_lshlrev_b32 v134, 12, v134")
    A("v_and_b32 v135, 7, v3")
    A("v_lshl_add_u32 v134, v135, 4, v134")
    A("s_lshl_b32 s53, s3, 19")
    A("s_lshl_b32 s57, s52, 17")
    A("s_add_u32 s53, s53, s57")
    A("s_lshl_b32 s57, s27, 7")
    A("s_add_u32 s53, s53, s57")
    A(f"s_add_u32 s53, s53, {PB}")
    A("s_xor_b32 s100, s92, 128")
    A("s_lshl_b32 s100, s100, 12")
    A(f"s_add_u32 s100, s100, {PB}")
    A("s_bfe_u32 s101, s26, 0x30002")
    A("s_lshl_b32 s101, s101, 11")
    A("s_xor_b32 s57, s3, 1")
    A("s_lshl_b32 s57, s57, 10")
    A("s_add_u32 s101, s101, s57")
    A("s_lshr_b32 s57, s26, 5")
    A("s_lshl_b32 s57, s57, 8")
    A("s_add_u32 s101, s101, s57")
    A("s_and_b32 s57, s26, 3")
    A("s_lshl_b32 s57, s57, 6")
    A("s_add_u32 s101, s101, s57")
    A("v_lshlrev_b32 v135, 1, v1")
    A("v_bfe_u32 v136, v1, 3, 2")
    A("v_cmp_eq_u32 s[8:9], 1, v136")
    A("v_cmp_eq_u32 s[10:11], 2, v136")
    A("v_cmp_eq_u32 s[12:13], 3, v136")
    if tlb & 1:
        A("s_mov_b64 exec, 1")
        A("buffer_load_dword v160, v134, s[48:51], s53 offen")
        A("buffer_load_dword v161, v6, s[48:51], s100 offen")
        A("buffer_load_ushort v162, v135, s[44:47], s101 offen")
        A("buffer_load_dword v163, v115, s[36:39], s56 offen")
        A("s_mov_b64 exec, -1")
    A("s_cmp_lg_u32 s6, 3")
    A("s_cbranch_scc1 L_noarr")
    A("v_mov_b32 v132, 0")
    A("v_mov_b32 v133, 1")
    A("s_mov_b64 exec, 1")
    A("buffer_atomic_add v133, v132, s[40:43], 0 offen")
    A("s_mov_b64 exec, -1")
    A("s_branch L_tail")
    A.label("L_noarr")
    if dry & 2:
        A("s_mov_b64 s[96:97], 0")
        A("s_mov_b64 exec, 0")
    A.label("L_tail")
    A(f"v_mov_b32 v132, {L_C4}")
    lds_wait_ge(132, 133, 8, sleep=2)
    stamp(5)
    pub_q_global("c4")
    if wo_c5:
        A(f"v_mov_b32 v132, {L_C5}")
        lds_wait_ge(132, 133, wo_c5, sleep=1)
    stamp(6)
    def wo_loads():
        for e in range(8):
            A(f"s_add_u32 s57, s56, {8 * (e & 3) * 1024}")
            A(f"buffer_load_dwordx4 v[{W + 4 * e}:{W + 4 * e + 3}], v115, s[36:39], s57 offen offset:{(e >> 2) * 1024} {ldflag}")
    live_only(wo_loads)
    transpose(7)
    stamp(8)

    def oloads(b):
        A(f"buffer_load_dwordx4 v[{b}:{b + 3}], v113, s[48:51], s54 offen sc1")
        A(f"buffer_load_dwordx4 v[{b + 4}:{b + 7}], v113, s[48:51], s54 offen offset:16 sc1")
        A(f"buffer_load_dwordx4 v[{b + 8}:{b + 11}], v114, s[48:51], s55 offen sc1")
    poll2("o", oloads, 3, [PO, 8, 20][:o_depth], (116, 156), o_thr, o_sleep, alt=(54, 55))
    stamp(9)
    A("v_add_f32 v128, v124, v125")
    A("s_nop 1")
    A("v_mov_b32_dpp v129, v128 row_ror:8 row_mask:0xf bank_mask:0xf")
    A("v_sub_f32 v129, v129, v128")
    A("v_exp_f32 v129, v129")
    A("s_nop 0")
    A("v_add_f32 v129, 1.0, v129")
    A("v_rcp_f32 v129, v129")
    A("s_nop 0")
    for i in range(8):
        A(f"v_mul_f32 v{116 + i}, v129, v{116 + i}")
    for i in range(8):
        A(f"v_add_f32_dpp v{156 + i}, v{116 + i}, v{116 + i} row_ror:8 row_mask:0xf bank_mask:0xf")
    for u in range(4):
        A(f"v_cvt_pk_bf16_f32 v{XF + u}, v{156 + 2 * u}, v{156 + 2 * u + 1}")
    A("s_nop 1")
    do_mfma(XF)
    A("s_nop 3")
    reduce_helpers(L_C2, 116)
    tag4(116, TG)
    live_only(lambda: A("buffer_store_dwordx4 v[116:119], v134, s[48:51], s53 offen sc1"))
    stamp(10)
    A("s_cmp_eq_u32 s6, 0")
    A("s_cbranch_scc1 L_final")
    pub_o_global("end", True)
    A("s_cbranch_execz L_hend")
    A("s_cmp_lg_u32 s6, 1")
    A("s_cbranch_scc1 L_hend")
    A("s_cmp_lg_u32 s2, 0")
    A("s_cbranch_scc1 L_hend")
    A("s_load_dwordx2 s[62:63], s[24:25], s65")
    A("s_waitcnt lgkmcnt(0)")
    A("s_add_u32 s62, s62, 1")
    A("s_addc_u32 s63, s63, 0")
    A("v_mov_b32 v60, 0")
    A("s_mov_b64 exec, 1")
    A(f"s_mov_b32 s60, {SPIN_MAX}")
    A.label("L_epw")
    A("buffer_load_dword v54, v60, s[40:43], 0 offen sc1")
    A("s_waitcnt vmcnt(0)")
    A("v_readfirstlane_b32 s61, v54")
    A("s_cmp_ge_u32 s61, 256")
    A("s_cbranch_scc1 L_epok")
    A("s_sub_u32 s60, s60, 1")
    A("s_cmp_lg_u32 s60, 0")
    A("s_cbranch_scc1 L_epw")
    A.label("L_epok")
    A("v_mov_b32 v52, s62")
    A("v_mov_b32 v53, s63")
    A("buffer_store_dwordx2 v[52:53], v60, s[48:51], s65 offen")
    A("s_branch L_hend")
    A.label("L_final")
    pub_o_global("end0", True)

    def ploads(b):
        for i in range(4):
            A(f"buffer_load_dwordx4 v[{b + 4 * i}:{b + 3 + 4 * i}], v6, s[48:51], s100 offen offset:{1024 * i} sc1")
    poll2("p", ploads, 4, [8, 76, 92][:p_depth], (24, 56), p_thr, p_sleep)
    stamp(11)
    for i in range(4):
        A(f"v_add_f32 v{44 + i}, v{24 + i}, v{28 + i}")
        A(f"v_add_f32 v{48 + i}, v{32 + i}, v{36 + i}")
    for i in range(4):
        A(f"v_add_f32 v{44 + i}, v{44 + i}, v{48 + i}")
    A("s_nop 1")
    for i in range(4):
        A(f"v_add_f32_dpp v{48 + i}, v{44 + i}, v{44 + i} row_ror:8 row_mask:0xf bank_mask:0xf")
    for i in range(4):
        A(f"v_mov_b32 v{44 + i}, v{48 + i}")
    A("s_nop 1")
    for i in range(4):
        A(f"v_permlane16_swap_b32 v{44 + i}, v{48 + i}")
    A("s_nop 1")
    for i in range(4):
        A(f"v_add_f32 v{48 + i}, v{44 + i}, v{48 + i}")
    for i in range(4):
        A(f"v_mov_b32 v{44 + i}, v{48 + i}")
    A("s_nop 1")
    for i in range(4):
        A(f"v_permlane32_swap_b32 v{44 + i}, v{48 + i}")
    A("s_nop 1")
    for i in range(4):
        A(f"v_add_f32 v{48 + i}, v{44 + i}, v{48 + i}")
    A("v_cndmask_b32 v48, v48, v49, s[8:9]")
    A("v_cndmask_b32 v48, v48, v50, s[10:11]")
    A("v_cndmask_b32 v48, v48, v51, s[12:13]")
    A("v_cvt_pk_bf16_f32 v48, v48, v48")
    A("s_mov_b32 exec_hi, 0")
    live_only(lambda: A("buffer_store_short v48, v135, s[44:47], s101 offen"))
    stamp(12)
    A.label("L_hend")
    if dry & 2:
        A("s_cbranch_execnz L_hexit")
        A("s_mov_b64 s[96:97], -1")
        A("s_mov_b64 exec, -1")
        A("s_branch L_tail")
        A.label("L_hexit")
    dump_stamps(13)
    A.label("L_end")
    A("s_endpgm")

    out = [HEADER.rstrip("\n")]
    out.append(f"; @launch grid=(256,1,1) block=(768,1,1) lds={LDS_BYTES}")
    out.append('.amdgcn_target "amdgcn-amd-amdhsa--gfx950"')
    out.append(".text")
    out.append(f".globl {NAME}")
    out.append(".p2align 8")
    out.append(f".type {NAME},@function")
    out += A.L
    out.append('.section .rodata,"a"')
    out.append(".p2align 6")
    out.append(f".amdhsa_kernel {NAME}")
    out.append("  .amdhsa_next_free_vgpr 168")
    out.append("  .amdhsa_next_free_sgpr 102")
    out.append("  .amdhsa_accum_offset 168")
    out.append("  .amdhsa_group_segment_fixed_size 0")
    out.append("  .amdhsa_kernarg_size 104")
    out.append("  .amdhsa_user_sgpr_count 2")
    out.append("  .amdhsa_user_sgpr_kernarg_segment_ptr 1")
    out.append("  .amdhsa_system_sgpr_workgroup_id_x 1")
    out.append(".end_amdhsa_kernel")
    return "\n".join(out) + "\n"


if __name__ == "__main__":
    import argparse
    ap = argparse.ArgumentParser()
    ap.add_argument("-o", default="concat_heads__sliding_block_cached__sliding_block_cached__decode.s")
    ap.add_argument("--instr", action="store_true")
    ap.add_argument("--ldflag", default="nt")
    for nm, dv in (("q_sleep", 4), ("o_thr", 16), ("o_sleep", 1), ("o_depth", 3), ("p_thr", 16), ("p_sleep", 2),
                   ("p_depth", 3), ("remap", 1), ("pre_k", 4), ("wo_c5", 0), ("dry", 3), ("tlb", 1)):
        ap.add_argument("--" + nm.replace("_", "-"), type=int, default=dv)
    a = ap.parse_args()
    kw = vars(a).copy()
    o = kw.pop("o")
    open(o, "w").write(gen(**kw))
```
